```python
import torch

def _softmax(x, axis=-1):
    return torch.softmax(x, dim=axis)
def _gelu(x):
    return torch.nn.functional.gelu(x, approximate="tanh")
def _silu(x):
    return torch.nn.functional.silu(x)
def _sigmoid(x):
    return torch.sigmoid(x)
def _layernorm(x, axis=-1, eps=1e-5):
    m = x.mean(dim=axis, keepdim=True)
    v = x.var(dim=axis, keepdim=True, unbiased=False)
    return (x - m) / torch.sqrt(v + eps)
def _scatter_add(tgt, idx, src, axis=0):
    return tgt.clone().index_add_(axis, idx, src)
def _segment_sum(src, seg, n):
    out = torch.zeros((n,) + src.shape[1:], dtype=src.dtype)
    return out.index_add_(0, seg, src)
def _pad(x, pw):
    flat = tuple(v for pair in reversed(pw) for v in pair)
    return torch.nn.functional.pad(x, flat)

kernel_name = 'standalone__swiglu_ffn__prompt'

def setup_inputs():

    _w = (lambda a: (lambda t: t.to(torch.bfloat16) if t.is_floating_point() else t)(torch.as_tensor(a)))
    B, S, D, F = 1, 2048, 1024, 3584
    return {
        "x": _w((lambda *s: torch.randn(*s, dtype=torch.bfloat16) * 0.05)(B, S, D)),
        "w_gate": _w((lambda *s: torch.randn(*s, dtype=torch.bfloat16) * 0.05)(D, F)),
        "w_up": _w((lambda *s: torch.randn(*s, dtype=torch.bfloat16) * 0.05)(D, F)),
        "w_down": _w((lambda *s: torch.randn(*s, dtype=torch.bfloat16) * 0.05)(F, D)),
    }

def reference(x, w_gate, w_up, w_down):
    g = _silu(x @ w_gate)
    u = x @ w_up
    return (g * u) @ w_down
```

```python
NAME = "standalone__swiglu_ffn__prompt_kernel"

class Asm:
    def __init__(self):
        self.lines = []
    def __call__(self, s=""):
        for l in s.split("\n"):
            l = l.strip()
            if l == "": continue
            if l.endswith(":") or l.startswith("."):
                self.lines.append(l)
            else:
                self.lines.append("    " + l)
    def text(self):
        return "\n".join(self.lines) + "\n"

HEADER = """; Kernarg layout for this problem (56 bytes, ptrs only, base s[0:1]):
"""

def kernel_begin(a, name):
    a(f".globl {name}\n.p2align 8\n.type {name},@function\n{name}:")

def descriptor(name, vgpr, accum, sgpr=102):
    return f""".p2align 6
.amdhsa_kernel {name}
  .amdhsa_next_free_vgpr {vgpr}
  .amdhsa_next_free_sgpr {sgpr}
  .amdhsa_accum_offset {accum}
  .amdhsa_group_segment_fixed_size 0
  .amdhsa_kernarg_size 56
  .amdhsa_user_sgpr_count 2
  .amdhsa_user_sgpr_kernarg_segment_ptr 1
  .amdhsa_system_sgpr_workgroup_id_x 1
  .amdhsa_float_denorm_mode_32 3
.end_amdhsa_kernel
"""

def wrap(launches, body, descs):
    s = HEADER
    if len(launches) == 1 and launches[0][0] == NAME:
        k, g, b, lds = launches[0]
        s += f"; @launch grid=({g},1,1) block=({b},1,1) lds={lds}\n"
    else:
        for k, g, b, lds in launches:
            s += f"; @launch kernel={k} grid=({g},1,1) block=({b},1,1) lds={lds}\n"
    s += '.amdgcn_target "amdgcn-amd-amdhsa--gfx950"\n.text\n'
    s += body
    s += '.section .rodata,"a"\n'
    s += "".join(descs)
    return s
```

```python
import sys, math
from asmlib import *

MT_STRIDE = 448 * 256
H_BYTES = 128 * MT_STRIDE
STAMP_OFF = 0x8000000

def interleave(a, mfmas, fillers):
    for s in fillers.get(-1, []): a(s)
    for i, m in enumerate(mfmas):
        a(m)
        for s in fillers.get(i, []): a(s)

class Stamps:
    def __init__(self, a, on, base, n):
        self.a, self.on, self.base, self.n, self.k = a, on, base, n, 0
    def stamp(self, real=False):
        if not self.on: return ""
        r = self.base + 2 * self.k; self.k += 1
        assert self.k <= self.n
        return f"s_mem{'real' if real else ''}time s[{r}:{r+1}]"
    def dump(self, wsreg, off, vtmp, wave_s):
        if not self.on: return
        a = self.a
        a(f"""s_waitcnt lgkmcnt(0)
        s_cmp_lg_u32 {wave_s}, 0
        s_cbranch_scc1 L_nostamp_{off}
        s_mul_i32 s3, s2, {self.n * 8}
        s_add_u32 s3, s3, {STAMP_OFF + off}
        v_mov_b32 v{vtmp}, s3
        s_mov_b64 exec, 1""")
        for i in range(self.n):
            j = self.k - 1 if i == self.n - 1 else min(i, self.k - 2)
            r = self.base + 2 * j
            a(f"v_mov_b32 v{vtmp+2}, s{r}\nv_mov_b32 v{vtmp+3}, s{r+1}\nglobal_store_dwordx2 v{vtmp}, v[{vtmp+2}:{vtmp+3}], s[{wsreg}:{wsreg+1}] offset:{8*i}\ns_nop 1")
        a(f"s_waitcnt vmcnt(0)\nL_nostamp_{off}:")

def gen_p1(a, name, o):
    st = Stamps(a, o.get("stamps"), 64, 16)
    kernel_begin(a, name)
    XM = o.get("xm", 8)
    XN = 32 // XM
    GM = 8 // XM
    lg = lambda v: int(math.log2(v))
    sX, sW, sH = 4, 8, 12
    s_tm, s_tn, s_w, s_wm, s_wn, s_lm, s_ln = 16, 17, 18, 19, 20, 21, 22
    sxo, sxm, swo, swm = 24, 32, 40, 48
    t0, t1, t2 = 56, 57, 58
    sWS = 60
    vLane, vX, vW = 1, 2, 3
    vXR = 4
    vWR = 8
    vS1, vS2, vS3 = 15, 16, 17
    vT = 18
    ACC = 32
    def acc(mt, j): return ACC + (mt * 7 + j) * 4
    def fx(s, mt): return s * 60 + mt * 4
    def fw(s, j): return s * 60 + 32 + j * 4
    a(st.stamp(True)); a(st.stamp())
    a(f"""
    s_cmp_ge_u32 s2, 256
    s_cbranch_scc1 L_p1_end
    s_load_dwordx4 s[{sX}:{sX+3}], s[0:1], 0
    s_load_dwordx2 s[{sH}:{sH+1}], s[0:1], 16
    s_load_dwordx2 s[{sWS}:{sWS+1}], s[0:1], 48
    v_lshrrev_b32 v{vT}, 6, v0
    v_and_b32 v{vLane}, 63, v0
    s_and_b32 s{t0}, s2, 7
    v_readfirstlane_b32 s{s_w}, v{vT}
    s_lshr_b32 s{t1}, s2, 3
    s_and_b32 s{s_lm}, s{t1}, {XM-1}
    s_lshr_b32 s{s_ln}, s{t1}, {lg(XM)}
    s_and_b32 s{t1}, s{t0}, {GM-1}
    s_lshr_b32 s{t2}, s{t0}, {lg(GM)}
    s_mul_i32 s{t1}, s{t1}, {XM}
    s_add_u32 s{s_tm}, s{t1}, s{s_lm}
    s_mul_i32 s{t2}, s{t2}, {XN}
    s_add_u32 s{s_tn}, s{t2}, s{s_ln}
    s_and_b32 s{s_wm}, s{s_w}, 1
    s_lshr_b32 s{s_wn}, s{s_w}, 1
    """)
    if o.get("codepf", True):
        a(f"s_getpc_b64 s[62:63]\nv_lshlrev_b32 v{vT+1}, 7, v0\nglobal_load_dword v{vT+13}, v{vT+1}, s[62:63]")
    a(f"""
    v_lshrrev_b32 v{vT}, 4, v{vLane}
    s_lshl_b32 s{t0}, s{s_wm}, 2
    v_or_b32 v{vT+1}, s{t0}, v{vT}
    v_and_b32 v{vT+2}, 7, v{vLane}
    v_xor_b32 v{vT+1}, v{vT+1}, v{vT+2}
    v_lshlrev_b32 v{vT+1}, 4, v{vT+1}
    v_lshrrev_b32 v{vT+2}, 3, v{vLane}
    v_lshlrev_b32 v{vT+2}, 11, v{vT+2}
    s_lshl_b32 s{t1}, s{s_tm}, 19
    v_add3_u32 v{vX}, v{vT+1}, v{vT+2}, s{t1}
    """)
    a(f"""
    v_or_b32 v{vT+1}, s{t0}, v{vT}
    v_lshlrev_b32 v{vT+1}, 1, v{vT+1}
    v_or_b32 v{vT+1}, s{s_wn}, v{vT+1}
    v_and_b32 v{vT+2}, 15, v{vLane}
    v_xor_b32 v{vT+1}, v{vT+1}, v{vT+2}
    v_lshlrev_b32 v{vT+1}, 4, v{vT+1}
    v_mul_u32_u24 v{vT+2}, 7168, v{vT}
    s_mul_i32 s{t1}, s{s_tn}, 224
    s_and_b32 s{t1}, s{t1}, 0xffffffc0
    v_add3_u32 v{vW}, v{vT+1}, v{vT+2}, s{t1}
    """)
    rot = o.get("rot", True)
    for i in range(8):
        if rot:
            if XN <= 8: a(f"s_mul_i32 s{t0}, s{s_ln}, {8 // XN}")
            else: a(f"s_lshr_b32 s{t0}, s{s_ln}, {lg(XN // 8)}")
            a(f"s_add_u32 s{t0}, s{t0}, {i}\ns_and_b32 s{t0}, s{t0}, 7")
        else: a(f"s_mov_b32 s{t0}, {i}")
        a(f"s_lshl_b32 s{t0}, s{t0}, 2\ns_add_u32 s{t0}, s{t0}, s{s_w}\ns_lshl_b32 s{sxo+i}, s{t0}, 14\ns_lshl_b32 s{sxm+i}, s{t0}, 10")
    for i in range(8):
        if rot: a(f"s_mul_i32 s{t0}, s{s_lm}, {8 // XM}\ns_add_u32 s{t0}, s{t0}, {i}\ns_and_b32 s{t0}, s{t0}, 7")
        else: a(f"s_mov_b32 s{t0}, {i}")
        a(f"""s_and_b32 s{t1}, s{t0}, 1
        s_lshr_b32 s{t0}, s{t0}, 1
        s_lshl_b32 s{t0}, s{t0}, 2
        s_add_u32 s{t0}, s{t0}, s{t1}
        s_lshl_b32 s{t1}, s{s_wm}, 1
        s_add_u32 s{t0}, s{t0}, s{t1}
        s_mul_i32 s{swo+i}, s{t0}, 28672
        s_lshl_b32 s{t0}, s{t0}, 10
        s_lshl_b32 s{t1}, s{s_wn}, 14
        s_add_u32 s{swm+i}, s{t0}, s{t1}""")
    a(f"""
    s_waitcnt lgkmcnt(0)
    s_cmp_eq_u32 s{s_wn}, 0
    s_cselect_b32 s{sW}, s{sX+2}, s{sH}
    s_cselect_b32 s{sW+1}, s{sX+3}, s{sH+1}
    s_mov_b32 s{sW+2}, {1024*7168}
    s_mov_b32 s{sW+3}, 0x20000
    s_mov_b32 s{sX+2}, {2048*2048}
    s_mov_b32 s{sX+3}, 0x20000
    s_mov_b32 s{sH}, s{sWS}
    s_mov_b32 s{sH+1}, s{sWS+1}
    s_mov_b32 s{sH+2}, {H_BYTES}
    s_mov_b32 s{sH+3}, 0x20000
    """)
    a(st.stamp())
    XB = 65536
    def dma_x(t, i):
        return (f"s_add_u32 m0, s{sxm+i}, {XB + (t % 3) * 32768 - t * 128}",
                f"buffer_load_dwordx4 v{vX}, s[{sX}:{sX+3}], s{sxo+i} offen offset:{t*128} lds")
    def dma_w(t, i):
        return (f"s_add_u32 m0, s{swm+i}, {(t % 2) * 32768}",
                f"buffer_load_dwordx4 v{vW}, s[{sW}:{sW+3}], s{swo+i} offen lds")
    wstep = f"v_add_u32 v{vW}, {64*7168}, v{vW}"
    NL = 8 // XN if XN <= 8 else 1
    def emit_dma(p): a(p[0]); a("s_nop 0"); a(p[1])
    for t in range(2):
        for i in range(8):
            emit_dma(dma_x(t, i)); emit_dma(dma_w(t, i))
        a(wstep)
    for i in range(8): emit_dma(dma_x(2, i))
    a(f"""
    v_and_b32 v{vT+1}, 15, v{vLane}
    v_lshrrev_b32 v{vT+2}, 1, v{vT+1}
    v_xor_b32 v{vT+2}, v{vT+2}, v{vT}
    v_lshlrev_b32 v{vT+2}, 4, v{vT+2}
    v_lshlrev_b32 v{vT+3}, 7, v{vT+1}
    s_lshl_b32 s{t0}, s{s_wm}, 14
    s_add_u32 s{t0}, s{t0}, {XB}
    v_add3_u32 v{vXR}, v{vT+2}, v{vT+3}, s{t0}
    v_xor_b32 v{vXR+1}, 64, v{vXR}
    v_add_u32 v{vXR+2}, 0x10000, v{vXR}
    v_add_u32 v{vXR+3}, 0x10000, v{vXR+1}
    """)
    a(f"""
    v_bfe_u32 v{vT+2}, v{vLane}, 2, 2
    v_and_b32 v{vT+3}, 1, v{vT}
    v_lshl_or_b32 v{vT+3}, v{vT+3}, 2, v{vT+2}
    v_lshl_add_u32 v{vT+4}, v{vT}, 3, v{vT+2}
    v_lshlrev_b32 v{vT+4}, 8, v{vT+4}
    v_and_b32 v{vT+5}, 3, v{vLane}
    v_lshlrev_b32 v{vT+6}, 3, v{vT+5}
    s_and_b32 s{t0}, s{s_tn}, 1
    s_lshl_b32 s{t1}, s{s_wn}, 2
    s_add_u32 s{t1}, s{t1}, s{t0}
    """)
    for j in range(3):
        a(f"""s_add_u32 s{t2}, s{t1}, {j}
        v_xor_b32 v{vT+7}, s{t2}, v{vT+3}
        v_lshlrev_b32 v{vT+7}, 5, v{vT+7}
        v_add3_u32 v{vWR+j}, v{vT+7}, v{vT+4}, v{vT+6}
        v_xor_b32 v{vT+7}, 16, v{vWR+j}
        v_add_u32 v{vWR+3+j}, 0x4000, v{vT+7}""")
    a(f"""s_add_u32 s{t2}, s{t0}, 3
    v_xor_b32 v{vT+7}, s{t2}, v{vT+3}
    v_lshlrev_b32 v{vT+7}, 5, v{vT+7}
    v_lshrrev_b32 v{vT+8}, 1, v{vT+5}
    v_xor_b32 v{vT+9}, s{s_wn}, v{vT+8}
    v_lshlrev_b32 v{vT+9}, 4, v{vT+9}
    v_lshlrev_b32 v{vT+8}, 14, v{vT+8}
    v_and_b32 v{vT+10}, 1, v{vT+5}
    v_lshlrev_b32 v{vT+10}, 3, v{vT+10}
    v_add3_u32 v{vT+7}, v{vT+7}, v{vT+4}, v{vT+9}
    v_add3_u32 v{vWR+6}, v{vT+7}, v{vT+8}, v{vT+10}
    """)
    a(f"""
    s_lshl_b32 s{t0}, s{s_tm}, 1
    s_add_u32 s{t0}, s{t0}, s{s_wm}
    s_mul_i32 s{t0}, s{t0}, {8*MT_STRIDE}
    s_mul_i32 s{t1}, s{s_tn}, {14*256}
    s_add_u32 s{t0}, s{t0}, s{t1}
    s_lshl_b32 s{t1}, s{s_wn}, 11
    s_add_u32 s{t1}, s{t0}, s{t1}
    s_lshl_b32 s{t2}, s{s_wn}, 8
    s_add_u32 s{t0}, s{t0}, s{t2}
    s_add_u32 s{t0}, s{t0}, {6*256}
    v_lshlrev_b32 v{vT+1}, 4, v{vT+1}
    v_and_b32 v{vT+2}, 1, v{vT}
    v_lshrrev_b32 v{vT+3}, 1, v{vT}
    v_lshl_or_b32 v{vT+4}, v{vT+2}, 1, v{vT+3}
    v_lshlrev_b32 v{vT+5}, 8, v{vT+4}
    v_add3_u32 v{vS1}, v{vT+5}, v{vT+1}, s{t1}
    v_mul_u32_u24 v{vT+5}, {MT_STRIDE}, v{vT+2}
    v_lshlrev_b32 v{vT+6}, 8, v{vT+3}
    v_add3_u32 v{vT+5}, v{vT+5}, v{vT+6}, v{vT+1}
    s_add_u32 s{t1}, s{t1}, 1024
    v_add_u32 v{vS2}, s{t1}, v{vT+5}
    v_mul_u32_u24 v{vT+5}, {MT_STRIDE}, v{vT+4}
    v_add3_u32 v{vS3}, v{vT+5}, v{vT+1}, s{t0}
    """)
    def reads(t, kk):
        s = kk
        xs = t % 3
        xb = vXR + kk + (2 if xs == 2 else 0)
        xo = (xs % 2) * 32768 if xs < 2 else 0
        rx = [f"ds_read_b128 a[{fx(s,mt)}:{fx(s,mt)+3}], v{xb} offset:{xo + mt*2048}" for mt in range(8)]
        rw = []
        for j in range(7):
            for hi in range(2):
                r = fw(s, j) + 2 * hi
                rw.append(f"ds_read_b64_tr_b16 a[{r}:{r+1}], v{vWR+j} offset:{(t % 2)*32768 + kk*8192 + hi*1024}")
        return [rx[0]] + rw + rx[1:]
    def mfmas(s, first=False):
        out = []
        for mt in range(8):
            js = range(7) if (mt % 2 == 0 or not o.get("snake", False)) else range(6, -1, -1)
            for j in js:
                d = acc(mt, j)
                c = "0" if first else f"v[{d}:{d+3}]"
                out.append(f"v_mfma_f32_16x16x32_bf16 v[{d}:{d+3}], a[{fw(s,j)}:{fw(s,j)+3}], a[{fx(s,mt)}:{fx(s,mt)+3}], {c}")
        return out
    a("s_waitcnt vmcnt(24)\ns_barrier")
    a(st.stamp())
    for r in reads(0, 0): a(r)
    a("s_waitcnt lgkmcnt(0)")
    a(st.stamp())
    NS = 16
    rd_start, rd_every = o.get("rd_start", 0), o.get("rd_every", 2)
    dma_every = o.get("dma_every", 7)
    dma_start = o.get("dma_start", 1)
    nomfma, nodma, nords = o.get("nomfma"), o.get("nodma"), o.get("nords")
    pending = []
    outstanding_after_w = 8
    for t in range(NS):
        for kk in range(2):
            fill = {}
            def add(p, s): fill.setdefault(p, []).append(s)
            nxt = (t, 1) if kk == 0 else (t + 1, 0)
            if nxt[0] < NS and not nords:
                for i, r in enumerate(reads(*nxt)): add(rd_start + i * rd_every, r)
            if kk == 1:
                lst = []
                hasx, hasw = t + 3 < NS, t + 2 < NS
                if hasx: lst += [dma_x(t + 3, i) for i in range(NL)]
                if hasw: lst += [dma_w(t + 2, i) for i in range(8)]
                nw_idx = len(lst)
                if hasx: lst += [dma_x(t + 3, i) for i in range(NL, 8)]
                outstanding_next = len(lst) - nw_idx
                pending = [(dma_start + n * dma_every, p, (n == nw_idx - 1 and hasw)) for n, p in enumerate(lst)]
            base = 0 if kk == 1 else 56
            for (pos, p, lastw) in pending:
                if base <= pos < base + 56 and not nodma:
                    q = pos - base
                    add(q - 1, p[0]); add(q, p[1])
                    if lastw: add(q, wstep)
            if kk == 0:
                for (pos, p, lastw) in pending: assert pos < 112
                pending = []
            m = mfmas(kk, first=(t == 0 and kk == 0))
            if nomfma: m = ["s_nop 1"] * 56
            if kk == 0 and t + 1 < NS:
                add(55, f"s_waitcnt vmcnt({outstanding_after_w}) lgkmcnt(0)")
                add(55, "s_barrier")
            elif nxt[0] < NS:
                add(55, "s_waitcnt lgkmcnt(0)")
            if kk == 1: outstanding_after_w = outstanding_next
            if kk == 1 and t % 2 == 1 and st.on and st.k < 13: add(54, st.stamp())
            interleave(a, m, fill)
    a("s_nop 7")
    sC = t0
    a(f"s_mov_b32 s{sC}, 0xbfb8aa3b")
    def swiglu(g, u, dst):
        T = vT
        for r in range(4): a(f"v_mul_f32 v{T+r}, s{sC}, v{g+r}")
        for r in range(4): a(f"v_exp_f32 v{T+r}, v{T+r}")
        for r in range(4): a(f"v_mul_f32 v{g+r}, v{g+r}, v{u+r}")
        for r in range(4): a(f"v_add_f32 v{T+r}, 1.0, v{T+r}")
        for r in range(4): a(f"v_rcp_f32 v{T+r}, v{T+r}")
        a("s_nop 0")
        for r in range(4): a(f"v_mul_f32 v{g+r}, v{g+r}, v{T+r}")
        a(f"v_cvt_pk_bf16_f32 v{dst}, v{g}, v{g+1}")
        a(f"v_cvt_pk_bf16_f32 v{dst+1}, v{g+2}, v{g+3}")
    aux = o.get("store_aux", "")
    def store(r, vaddr, mt):
        a(f"s_mov_b32 s{t1}, {mt*MT_STRIDE}\ns_nop 0")
        a(f"v_permlane16_swap_b32 v{r}, v{r+2}\nv_permlane16_swap_b32 v{r+1}, v{r+3}")
        a(f"buffer_store_dwordx4 v[{r}:{r+3}], v{vaddr}, s[{sH}:{sH+3}], s{t1} offen {aux}")
    for mt in range(8):
        d = acc(mt, 3)
        swiglu(acc(mt, 0), acc(mt, 3), d)
        swiglu(acc(mt, 1), acc(mt, 4), d + 2)
        store(d, vS1, mt)
        d2 = acc(mt & ~1, 4)
        swiglu(acc(mt, 2), acc(mt, 5), d2 + 2 * (mt & 1))
        if mt & 1:
            store(d2, vS2, mt - 1)
            A, B = acc(mt - 1, 6), acc(mt, 6)
            for r in range(4): a(f"v_permlane32_swap_b32 v{A+r}, v{B+r}")
            d3 = acc(mt & ~3, 5)
            swiglu(A, B, d3 + (mt & 2))
            if mt & 2: store(d3, vS3, mt - 3)
    a(st.stamp())
    if st.on:
        a("s_waitcnt vmcnt(0)"); a(st.stamp()); a(st.stamp(True))
    st.dump(sWS, 0, vT, f"s{s_w}")
    a("L_p1_end:\ns_endpgm")
    return descriptor(name, 376, 256)

def gen_p2(a, name, o):
    st = Stamps(a, o.get("stamps"), 64, 16)
    kernel_begin(a, name)
    lg = lambda v: int(math.log2(v))
    XM = o.get("p2_xm", 4); XN = 32 // XM; GM = 16 // XM
    sW, sH, sO = 4, 8, 12
    s_tm, s_tn, s_w, s_lm, s_ln = 16, 17, 18, 19, 20
    t0, t1, t2 = 24, 25, 26
    s_m0, s_hk, s_wk, s_c = 28, 29, 30, 31
    sWS = 60
    vLane, vH0, vH1, vW0, vW1, vWR, vO = 1, 2, 3, 4, 5, 6, 10
    vT = 12
    ACC = 32
    D = o.get("p2_depth", 5)
    NSLOT = 8
    def acc(mi, j): return ACC + (mi * 4 + j) * 4
    def fw(s, kk, j): return (s * 8 + kk * 4 + j) * 4
    def fh(s, kk, mi): return 64 + (s * 4 + kk * 2 + mi) * 4
    a(st.stamp(True)); a(st.stamp())
    a(f"""
    s_cmp_ge_u32 s2, 256
    s_cbranch_scc1 L_p2_end
    s_load_dwordx4 s[{sW}:{sW+3}], s[0:1], 24
    s_load_dwordx2 s[{sWS}:{sWS+1}], s[0:1], 48
    v_lshrrev_b32 v{vT}, 6, v0
    v_and_b32 v{vLane}, 63, v0
    s_and_b32 s{t0}, s2, 7
    v_readfirstlane_b32 s{s_w}, v{vT}
    s_lshr_b32 s{t1}, s2, 3
    s_and_b32 s{s_lm}, s{t1}, {XM-1}
    s_lshr_b32 s{s_ln}, s{t1}, {lg(XM)}
    s_and_b32 s{t1}, s{t0}, {GM-1}
    s_lshr_b32 s{t2}, s{t0}, {lg(GM)}
    s_mul_i32 s{t1}, s{t1}, {XM}
    s_add_u32 s{s_tm}, s{t1}, s{s_lm}
    s_mul_i32 s{t2}, s{t2}, {XN}
    s_add_u32 s{s_tn}, s{t2}, s{s_ln}
    """)
    if o.get("codepf", True):
        a(f"s_getpc_b64 s[62:63]\nv_lshlrev_b32 v{vT+1}, 7, v0\nglobal_load_dword v{vT+13}, v{vT+1}, s[62:63]")
    a(f"""
    s_lshl_b32 s{t0}, s{s_tm}, 2
    s_add_u32 s{t0}, s{t0}, s{s_w}
    s_mul_i32 s{t0}, s{t0}, {2*MT_STRIDE}
    v_lshl_add_u32 v{vH0}, v{vLane}, 4, s{t0}
    v_add_u32 v{vH1}, {MT_STRIDE}, v{vH0}
    """)
    a(f"""
    v_lshrrev_b32 v{vT}, 3, v{vLane}
    v_and_b32 v{vT+1}, 2, v{vT}
    v_and_b32 v{vT+2}, 7, v{vLane}
    v_xor_b32 v{vT+1}, v{vT+1}, v{vT+2}
    v_lshlrev_b32 v{vT+1}, 4, v{vT+1}
    v_lshlrev_b32 v{vT}, 11, v{vT}
    s_lshl_b32 s{t0}, s{s_w}, 15
    s_lshl_b32 s{t1}, s{s_tn}, 7
    s_add_u32 s{t0}, s{t0}, s{t1}
    v_add3_u32 v{vW0}, v{vT}, v{vT+1}, s{t0}
    v_xor_b32 v{vW1}, 64, v{vW0}
    v_add_u32 v{vW1}, 0x4000, v{vW1}
    s_lshl_b32 s{s_m0}, s{s_w}, 11
    s_waitcnt lgkmcnt(0)
    s_mov_b32 s{sO}, s{sW+2}
    s_mov_b32 s{sO+1}, s{sW+3}
    s_mov_b32 s{sO+2}, {2048*2048}
    s_mov_b32 s{sO+3}, 0x20000
    s_mov_b32 s{sW+2}, {3584*2048}
    s_mov_b32 s{sW+3}, 0x20000
    s_mov_b32 s{sH}, s{sWS}
    s_mov_b32 s{sH+1}, s{sWS+1}
    s_mov_b32 s{sH+2}, {H_BYTES}
    s_mov_b32 s{sH+3}, 0x20000
    """)
    a(st.stamp())
    NS = 56
    lead = o.get("p2_lead", 0)
    if lead:
        a(f"s_add_u32 s{s_c}, s{s_lm}, s{s_ln}\ns_and_b32 s{s_c}, s{s_c}, {lead-1}")
    def kidx(t):
        if not lead:
            return [f"s_mov_b32 s{s_hk}, {t*2048}", f"s_mov_b32 s{s_wk}, {t*131072}"]
        G = lead
        vals = []
        for c in range(G):
            u = t - c
            if u < 0: b = t
            else:
                g0 = t - (u % G)
                if g0 + G - 1 >= NS: b = t
                else: b = g0 + G - 1 if u % G == 0 else t - 1
            vals.append(b)
        out = []
        base = max(set(vals), key=vals.count)
        out.append(f"s_mov_b32 s{s_hk}, {base}")
        for c in range(G):
            if vals[c] != base:
                out.append(f"s_cmp_eq_u32 s{s_c}, {c}"); out.append(f"s_cselect_b32 s{s_hk}, {vals[c]}, s{s_hk}")
        out += [f"s_lshl_b32 s{s_wk}, s{s_hk}, 17", f"s_lshl_b32 s{s_hk}, s{s_hk}, 11"]
        return out
    def loads(t):
        s = t % 8
        out = ["\n".join(kidx(t) + [f"s_add_u32 m0, s{s_m0}, {(t % NSLOT) * 8192}"])]
        out.append(f"buffer_load_dwordx4 v{vW0}, s[{sW}:{sW+3}], s{s_wk} offen lds\ns_add_u32 m0, s{s_m0}, {(t % NSLOT) * 8192 + 1024}")
        out.append(f"buffer_load_dwordx4 v{vW1}, s[{sW}:{sW+3}], s{s_wk} offen lds")
        for kk in range(2):
            for mi in range(2):
                r = fh(s, kk, mi)
                out.append(f"buffer_load_dwordx4 a[{r}:{r+3}], v{vH0+mi}, s[{sH}:{sH+3}], s{s_hk} offen offset:{kk*1024}")
        return out
    for t in range(D):
        for l in loads(t):
            a(l); a("s_nop 0")
    a(f"""
    v_lshrrev_b32 v{vT}, 4, v{vLane}
    v_bfe_u32 v{vT+1}, v{vLane}, 2, 2
    v_lshl_add_u32 v{vT+2}, v{vT}, 3, v{vT+1}
    v_lshlrev_b32 v{vT+2}, 7, v{vT+2}
    v_lshrrev_b32 v{vT+3}, 1, v{vT+1}
    v_and_b32 v{vT+4}, 1, v{vT}
    v_lshl_or_b32 v{vT+3}, v{vT+4}, 1, v{vT+3}
    v_and_b32 v{vT+5}, 3, v{vLane}
    v_lshlrev_b32 v{vT+5}, 3, v{vT+5}
    """)
    for j in range(4):
        a(f"v_xor_b32 v{vT+6}, {j}, v{vT+3}\nv_lshlrev_b32 v{vT+6}, 5, v{vT+6}\nv_add3_u32 v{vWR+j}, v{vT+6}, v{vT+2}, v{vT+5}")
    a(f"""
    v_and_b32 v{vT+1}, 15, v{vLane}
    v_lshlrev_b32 v{vT+1}, 11, v{vT+1}
    v_lshrrev_b32 v{vT+2}, 1, v{vT}
    v_lshl_or_b32 v{vT+2}, v{vT+4}, 1, v{vT+2}
    v_lshlrev_b32 v{vT+2}, 4, v{vT+2}
    s_lshl_b32 s{t0}, s{s_tm}, 18
    s_lshl_b32 s{t1}, s{s_w}, 16
    s_add_u32 s{t0}, s{t0}, s{t1}
    s_lshl_b32 s{t1}, s{s_tn}, 7
    s_add_u32 s{t0}, s{t0}, s{t1}
    v_add3_u32 v{vO}, v{vT+1}, v{vT+2}, s{t0}
    """)
    def reads(t):
        out = []
        for kk in range(2):
            for j in range(4):
                for hi in range(2):
                    r = fw(t % 2, kk, j) + 2 * hi
                    out.append(f"ds_read_b64_tr_b16 a[{r}:{r+1}], v{vWR+j} offset:{(t % NSLOT)*8192 + kk*4096 + hi*512}")
        return out
    def mfmas(t):
        out = []
        for kk in range(2):
            for mi in range(2):
                for j in range(4):
                    d = acc(mi, j)
                    c = "0" if (t == 0 and kk == 0) else f"v[{d}:{d+3}]"
                    A = fw(t % 2, kk, j); B = fh(t % 8, kk, mi)
                    out.append(f"v_mfma_f32_16x16x32_bf16 v[{d}:{d+3}], a[{A}:{A+3}], a[{B}:{B+3}], {c}")
        return out
    a(f"s_waitcnt vmcnt({6*(D-1)+4})\ns_barrier")
    a(st.stamp())
    for r in reads(0): a(r)
    for t in range(NS):
        last = min(t + D, NS) - 1
        n_after = (last - (t + 1)) * 6 + 4 if t + 1 <= last else 0
        a(f"s_waitcnt vmcnt({n_after}) lgkmcnt(0)")
        if t + 1 < NS: a("s_barrier")
        fill = {}
        def add(p, s): fill.setdefault(p, []).append(s)
        if t + D < NS:
            for i, l in enumerate(loads(t + D)): add(-1 + 2 * i if i else -1, l)
        if t + 1 < NS:
            for i, r in enumerate(reads(t + 1)): add(i * 12 // 16, r)
        if st.on and t % 7 == 6 and st.k < 12: add(15, st.stamp())
        interleave(a, mfmas(t), fill)
    a("s_nop 7")
    for mi in range(2):
        for jp in range(2):
            d0, d1 = acc(mi, 2 * jp), acc(mi, 2 * jp + 1)
            r = vT + 4 * (mi * 2 + jp)
            a(f"""v_cvt_pk_bf16_f32 v{r}, v{d0}, v{d0+1}
            v_cvt_pk_bf16_f32 v{r+1}, v{d0+2}, v{d0+3}
            v_cvt_pk_bf16_f32 v{r+2}, v{d1}, v{d1+1}
            v_cvt_pk_bf16_f32 v{r+3}, v{d1+2}, v{d1+3}
            s_mov_b32 s{t0}, {mi*16*2048}
            s_nop 0
            v_permlane16_swap_b32 v{r}, v{r+2}
            v_permlane16_swap_b32 v{r+1}, v{r+3}
            buffer_store_dwordx4 v[{r}:{r+3}], v{vO}, s[{sO}:{sO+3}], s{t0} offen offset:{jp*64}""")
    a(st.stamp())
    if st.on:
        a("s_waitcnt vmcnt(0)"); a(st.stamp()); a(st.stamp(True))
    st.dump(sWS, 256 * 16 * 8, 28, f"s{s_w}")
    a("L_p2_end:\ns_endpgm")
    return descriptor(name, 64 + 192, 64)

def build(fn, **o):
    a = Asm()
    d1 = gen_p1(a, "ffn_up_kernel", o)
    d2 = gen_p2(a, "ffn_down_kernel", o)
    a(".fill 8192, 4, 0xbf800000")
    launches = [("ffn_up_kernel", 256, 256, 163840), ("ffn_down_kernel", 256, 256, o.get("p2_lds", 98304))]
    if o.get("only") == 1: launches = launches[:1]
    if o.get("only") == 2: launches = launches[1:]
    open(fn, "w").write(wrap(launches, a.text(), [d1, d2]))

if __name__ == "__main__":
    build("k1.s")
    build("k1_st.s", stamps=True)
```

```python
import sys, math
from asmlib import *

MT = 112 * 1024
XCH_OFF = 0x1000000
SF_OFF = 0x1800000
XF_OFF = 0x1810000
WS_BYTES = 0x2000000
STAMP_OFF = 0x8000000
lg = lambda v: int(math.log2(v))

class Cnt:
    def __init__(self, mx, expect): self.n = 0; self.done = 0; self.tag = {}; self.mx = mx; self.cnt = {}; self.expect = expect
    def issue(self, tag):
        self.n += 1
        if tag is not True:
            self.tag[tag] = self.n; self.cnt[tag] = self.cnt.get(tag, 0) + 1
    def need(self, tags):
        k = 0
        for t in tags:
            assert t in self.tag, t
            assert self.cnt[t] == self.expect(t), (t, self.cnt[t])
            k = max(k, self.tag[t])
        if k <= self.done: return None
        c = min(self.n - k, self.mx)
        self.done = self.n - c
        return c

def exp_vm(t):
    if isinstance(t, str): return 1
    if t[0] == "hs": return 4 if t[1] < 3 else 2
    return {"x": 8, "w": 8, "d": 4, "h": 2}.get(t[0], 1)
def exp_lg(t): return {"x": 1, "w": 2, "r": 8}[t[0]]

class Op:
    def __init__(self, text, vm=None, lg=None, nvm=(), nlg=(), cost=4):
        self.text, self.vm, self.lg, self.nvm, self.nlg, self.cost = text, vm, lg, nvm, nlg, cost

class Em:
    def __init__(self, a): self.a = a; self.vm = Cnt(62, exp_vm); self.lg = Cnt(14, exp_lg)
    def wait(self, nvm=(), nlg=()):
        v = self.vm.need(nvm); l = self.lg.need(nlg)
        s = (f" vmcnt({v})" if v is not None else "") + (f" lgkmcnt({l})" if l is not None else "")
        if s: self.a("s_waitcnt" + s)
    def __call__(self, x):
        if callable(x) and not isinstance(x, Op): x = x()
        if isinstance(x, str): self.a(x); return
        if isinstance(x, (list, tuple)):
            for y in x: self(y)
            return
        self.wait(x.nvm, x.nlg)
        if x.text.endswith(" lds") and " m0," in self.a.lines[-1]: self.a("s_nop 0")
        if x.text.startswith("buffer_"):
            so = x.text.split("], ")[-1].split()[0]
            n = 0
            for l in reversed(self.a.lines[-6:]):
                if l.strip().startswith(f"v_readlane_b32 {so},"):
                    if n < 5: self.a(f"s_nop {4 - n}")
                    break
                if not l.endswith(":"): n += 1
        if x.text: self.a(x.text)
        if x.vm is not None: self.vm.issue(x.vm)
        if x.lg is not None: self.lg.issue(x.lg)
    def weave(self, mfmas, fill):
        self(fill.get(-1, []))
        for i, m in enumerate(mfmas):
            self(m); self(fill.get(i, []))
        for k in fill: assert k < len(mfmas), k

class Fill(dict):
    def add(self, p, x): self.setdefault(p, []).append(x)
    def load(self, p): return len([x for x in self.get(p, []) if x != ""])
    def place(self, p, x, cap=2, hi=10**9):
        while self.load(p) >= cap and p < hi: p += 1
        self.add(p, x); return p

def gen(a, name, o):
    e = Em(a)
    ST = o.get("stamps"); nst = [0]
    def stamp(real=False):
        if not ST or nst[0] >= 16: return ""
        r = 64 + 2 * nst[0]; nst[0] += 1
        return f"s_mem{'real' if real else ''}time s[{r}:{r+1}]"
    STAT = o.get("st_at", ["iss", "bar0", "t3", "t7", "t11", "t15", "chkA0", "chkA1", "epi", "pI", "pII", "pIII"])
    def sat(key):
        if key not in STAT: return ""
        if o.get("both"): return stamp(True) + "\n" + stamp(False)
        return stamp(o.get("real", False))
    kernel_begin(a, name)
    sX, sW, sH, sG, sD = 4, 8, 12, 60, 96
    sOUT = 100
    s_w, s_wm, s_wn, s_tm, s_tn, s_r, s_m0, s_mix = 16, 17, 18, 19, 20, 21, 22, 23
    sxo, sxm, swo, swm = 24, 32, 40, 48
    TW, TH = 24, 40
    t0, t1, t2, t3 = 56, 57, 58, 59
    vX, vW, vXR, vWR, vS2, vS3, vPF, vWg, vWk = 1, 2, 3, 7, 14, 15, 16, 17, 18
    vFl = 19
    vT = 20
    PARK = 240
    def gate(mt, s): return 32 + 64 * s + 4 * mt
    def up(mt, s): return 64 + 64 * s + 4 * mt
    def mixed(mt): return 224 + 4 * mt
    def acc(mt, j): return gate(mt, j) if j < 3 else (up(mt, j - 3) if j < 6 else mixed(mt))
    def fx(s, mt, kk): return s * 120 + (mt * 2 + kk) * 4
    def fw(s, j, kk): return s * 120 + 64 + (j * 2 + kk) * 4
    vLane, vQ, vM = 0, vT + 10, vT + 11
    e(stamp(True)); e(stamp())
    e(f"""
    s_cmp_ge_u32 s2, 256
    s_cbranch_scc1 L_end
    s_load_dwordx4 s[{sX}:{sX+3}], s[0:1], 0
    s_load_dwordx4 s[{sH}:{sH+3}], s[0:1], 16
    s_load_dwordx4 s[{sG}:{sG+3}], s[0:1], 40
    s_load_dwordx2 s[{sOUT}:{sOUT+1}], s[0:1], 32
    v_lshrrev_b32 v{vT}, 6, v0
    s_getpc_b64 s[{t2}:{t3}]
    s_lshr_b32 s{t1}, s2, 3
    v_readfirstlane_b32 s{s_w}, v{vT}
    v_and_b32 v{vM}, 15, v0
    s_lshl_b32 s{t0}, s{t1}, 11
    v_lshl_add_u32 v{vT+1}, v{vM}, 7, s{t0}""")
    e(Op(f"global_load_dword v{vPF}, v{vT+1}, s[{t2}:{t3}]", vm=True))
    e(f"""
    v_lshlrev_b32 v{vT+9}, 8, v0
    v_and_b32 v{vLane}, 63, v0
    s_and_b32 s{s_tm}, s{t1}, 7
    s_lshr_b32 s{t3}, s{t1}, 3
    s_and_b32 s{t0}, s2, 7
    s_lshl_b32 s{t0}, s{t0}, 2
    s_add_u32 s{s_tn}, s{t0}, s{t3}
    s_and_b32 s{s_wm}, s{s_w}, 1
    s_lshr_b32 s{s_wn}, s{s_w}, 1
    v_lshrrev_b32 v{vQ}, 4, v{vLane}
    s_lshl_b32 s{t0}, s{s_wm}, 2
    v_or_b32 v{vT+3}, s{t0}, v{vQ}
    v_and_b32 v{vT+2}, 7, v{vLane}
    v_xor_b32 v{vT+1}, v{vT+3}, v{vT+2}
    v_lshlrev_b32 v{vT+1}, 4, v{vT+1}
    v_lshrrev_b32 v{vT+2}, 3, v{vLane}
    v_lshlrev_b32 v{vT+2}, 11, v{vT+2}
    s_lshl_b32 s{t1}, s{s_tm}, 19
    v_add3_u32 v{vX}, v{vT+1}, v{vT+2}, s{t1}
    v_lshl_or_b32 v{vT+1}, v{vT+3}, 1, s{s_wn}
    v_xor_b32 v{vT+1}, v{vT+1}, v{vM}
    v_lshlrev_b32 v{vT+1}, 4, v{vT+1}
    v_mul_u32_u24 v{vT+2}, 7168, v{vQ}
    s_mul_i32 s{t1}, s{s_tn}, 224
    s_and_b32 s{t1}, s{t1}, 0xffffffc0
    v_add3_u32 v{vW}, v{vT+1}, v{vT+2}, s{t1}
    s_lshl_b32 s{t0}, s{t3}, 13
    s_lshl_b32 s{s_m0}, s{s_w}, 10
    s_or_b32 s{sxm}, s{t0}, s{s_m0}
    s_lshl_b32 s{sxo}, s{sxm}, 4
    s_xor_b32 s{sxm+1}, s{sxm}, 0x1000
    s_lshl_b32 s{sxo+1}, s{sxm+1}, 4
    s_lshr_b32 s{t1}, s{s_tm}, 1
    s_lshl_b32 s{t1}, s{t1}, 12
    s_and_b32 s{t0}, s{s_tm}, 1
    s_lshl_b32 s{t0}, s{t0}, 10
    s_or_b32 s{t0}, s{t0}, s{t1}
    s_lshl_b32 s{t1}, s{s_wm}, 11
    s_or_b32 s{t0}, s{t0}, s{t1}
    s_lshl_b32 s{t2}, s{s_wn}, 14
    s_mul_i32 s{swo}, s{t0}, 28
    s_or_b32 s{swm}, s{t0}, s{t2}""")
    for i in range(2, 8):
        e(f"s_xor_b32 s{sxm+i}, s{sxm}, {i << 12}\ns_lshl_b32 s{sxo+i}, s{sxm+i}, 4")
    for i in range(1, 8):
        c = ((i >> 1) << 12) | ((i & 1) << 10)
        e(f"s_xor_b32 s{t1}, s{t0}, {c}\ns_mul_i32 s{swo+i}, s{t1}, 28\ns_or_b32 s{swm+i}, s{t1}, s{t2}")
    vW1 = vT + 8
    e(f"""
    v_add_u32 v{vW1}, {64*7168}, v{vW}
    s_cmp_eq_u32 s{s_wn}, 0
    s_mov_b32 s{sW+2}, {1024*7168}
    s_mov_b32 s{sW+3}, 0x20000
    s_waitcnt lgkmcnt(0)
    s_cselect_b32 s{sW}, s{sX+2}, s{sH}
    s_cselect_b32 s{sW+1}, s{sX+3}, s{sH+1}
    s_mov_b32 s{sX+2}, {2048*2048}
    s_mov_b32 s{sX+3}, 0x20000
    """)
    XB = 65536
    NL, NLW = 2, 1
    def dma_x(t, i):
        return (f"s_add_u32 m0, s{sxm+i}, {XB + (t % 3) * 32768 - t * 128}",
                Op(f"buffer_load_dwordx4 v{vX}, s[{sX}:{sX+3}], s{sxo+i} offen offset:{t*128} lds", vm=("x", t)))
    def dma_w(t, i, v=None):
        aux = o.get("w_aux", "nt") if i < o.get("w_aux_n", NLW) else ""
        return (f"s_add_u32 m0, s{swm+i}, {(t % 2) * 32768}",
                Op(f"buffer_load_dwordx4 v{v or vW}, s[{sW}:{sW+3}], s{swo+i} offen {aux} lds", vm=("w", t)))
    def emit_dma(p): e(p[0]); e(p[1])
    def mix(p, q):
        out = []; p = list(p); q = list(q)
        while p or q:
            if p: out.append(p.pop(0))
            if q: out.append(q.pop(0))
        return out
    lead0 = [dma_x(0, i) for i in range(NL)] + [dma_w(0, i) for i in range(NLW)]
    lead1 = [dma_x(1, i) for i in range(NL)] + [dma_w(1, i, vW1) for i in range(NLW)]
    lead2 = [dma_x(2, i) for i in range(NL)]
    rest0 = mix([dma_w(0, i) for i in range(NLW, 8)], [dma_x(0, i) for i in range(NL, 8)])
    rest1 = mix([dma_w(1, i, vW1) for i in range(NLW, 8)], [dma_x(1, i) for i in range(NL, 8)])
    rest2 = [dma_x(2, i) for i in range(NL, 8)]
    mode = o.get("pro", 2)
    if mode == 1: seq = lead0 + lead1 + lead2 + rest0 + rest1 + rest2; n0 = len(lead0 + lead1 + lead2 + rest0)
    elif mode == 2: seq = lead0 + lead1 + rest0 + rest1 + lead2 + rest2; n0 = len(lead0 + lead1 + rest0)
    elif mode == 3: seq = lead0 + rest0 + lead1 + lead2 + rest1 + rest2; n0 = len(lead0 + rest0)
    npre = n0 + o.get("pro_extra", 8)
    nfirst = o.get("pro_first", 8)
    for p in seq[:nfirst]: emit_dma(p)
    e(sat("iss"))
    e(f"""
    s_mov_b32 s{sD}, s{sH+2}
    s_mov_b32 s{sD+1}, s{sH+3}
    s_mov_b32 s{sD+2}, {3584*2048}
    s_mov_b32 s{sD+3}, 0x20000
    s_mov_b32 s{sH}, s{sG+2}
    s_mov_b32 s{sH+1}, s{sG+3}
    s_mov_b32 s{sH+2}, {WS_BYTES}
    s_mov_b32 s{sH+3}, 0x20000
    s_mov_b32 s{sG+2}, 256
    s_mov_b32 s{sG+3}, 0x20000
    """)
    NRS = o.get("nrs", 8)
    e(f"""
    s_lshl_b32 s{t0}, s{s_tm}, 1
    s_add_u32 s{t0}, s{t0}, s{s_wm}
    s_lshl_b32 s{t0}, s{t0}, 5
    s_add_u32 s{t0}, s{t0}, s{s_tn}
    s_lshl_b32 s{t0}, s{t0}, 7
    s_lshl_b32 s{t1}, s{s_wn}, 2
    s_add_u32 s{t0}, s{t0}, s{t1}
    s_add_u32 s{t0}, s{t0}, {SF_OFF}
    s_xor_b32 s{t1}, s2, 1
    s_lshl_b32 s{t1}, s{t1}, 2
    s_add_u32 s{t1}, s{t1}, s{s_w}
    s_lshl_b32 s{t2}, s{t1}, 7
    s_add_u32 s{t2}, s{t2}, {XF_OFF}
    v_lshlrev_b32 v{vT}, 25, v{vLane}
    v_add_u32 v{vFl}, s{t0}, v{vT}
    v_add_u32 v{vT+1}, s{t2}, v{vT}
    v_accvgpr_write_b32 a{PARK+0}, v{vT+1}
    s_lshl_b32 s{t0}, s2, {15 - lg(NRS // 8)}
    s_lshr_b32 s{t3}, s{s_m0}, {lg(NRS // 8)}
    s_lshl_b32 s{t3}, s{t3}, 3
    s_add_u32 s{t0}, s{t0}, s{t3}
    s_cmp_lt_u32 s2, {NRS}
    s_cselect_b32 s{t0}, s{t0}, {WS_BYTES}
    s_add_u32 s{t0}, s{t0}, {SF_OFF}
    v_and_b32 v{vT+2}, {64 // (NRS // 8) - 1}, v{vLane}
    v_lshl_add_u32 v{vT+2}, v{vT+2}, 7, s{t0}
    v_mov_b32 v{vT+4}, 0
    v_mov_b32 v{vT+5}, 0""")
    e(Op(f"buffer_store_dwordx2 v[{vT+4}:{vT+5}], v{vT+2}, s[{sH}:{sH+3}], 0 offen sc1", vm="reset"))
    e(f"""
    s_xor_b32 s{t2}, s{t2}, 512
    v_add_u32 v{vT+1}, s{t2}, v{vT}
    v_accvgpr_write_b32 a{PARK+1}, v{vT+1}
    v_lshlrev_b32 v{vT+4}, 4, v{vLane}
    s_lshl_b32 s{t1}, s{t1}, 13
    s_add_u32 s{t1}, s{t1}, {XCH_OFF}
    v_add_u32 v{vT+1}, s{t1}, v{vT+4}
    v_accvgpr_write_b32 a{PARK+2}, v{vT+1}
    v_xor_b32 v{vT+1}, 0x8000, v{vT+1}
    v_accvgpr_write_b32 a{PARK+3}, v{vT+1}
    """)
    e(f"""
    v_lshrrev_b32 v{vT+2}, 1, v{vM}
    v_xor_b32 v{vT+2}, v{vT+2}, v{vQ}
    v_lshlrev_b32 v{vT+2}, 4, v{vT+2}
    v_lshlrev_b32 v{vT+3}, 7, v{vM}
    s_lshl_b32 s{t0}, s{s_wm}, 14
    s_add_u32 s{t0}, s{t0}, {XB}
    v_add3_u32 v{vXR}, v{vT+2}, v{vT+3}, s{t0}
    v_xor_b32 v{vXR+1}, 64, v{vXR}
    v_add_u32 v{vXR+2}, 0x10000, v{vXR}
    v_add_u32 v{vXR+3}, 0x10000, v{vXR+1}
    v_bfe_u32 v{vT+2}, v{vLane}, 2, 2
    v_and_b32 v{vT+1}, 1, v{vQ}
    v_lshl_or_b32 v{vT+3}, v{vT+1}, 2, v{vT+2}
    v_lshl_add_u32 v{vT}, v{vQ}, 3, v{vT+2}
    v_lshlrev_b32 v{vT+4}, 8, v{vT}
    v_and_b32 v{vT+5}, 3, v{vLane}
    v_lshlrev_b32 v{vT+6}, 3, v{vT+5}
    s_and_b32 s{t0}, s{s_tn}, 1
    s_lshl_b32 s{t1}, s{s_wn}, 2
    s_add_u32 s{t1}, s{t1}, s{t0}
    """)
    for j in range(3):
        e(f"""s_add_u32 s{t2}, s{t1}, {j}
        v_xor_b32 v{vT+7}, s{t2}, v{vT+3}
        v_lshlrev_b32 v{vT+7}, 5, v{vT+7}
        v_add3_u32 v{vWR+j}, v{vT+7}, v{vT+4}, v{vT+6}
        v_xor_b32 v{vT+7}, 16, v{vWR+j}
        v_add_u32 v{vWR+3+j}, 0x4000, v{vT+7}""")
    e(f"""s_add_u32 s{t2}, s{t0}, 3
    v_xor_b32 v{vT+7}, s{t2}, v{vT+3}
    v_lshlrev_b32 v{vT+7}, 5, v{vT+7}
    v_lshrrev_b32 v{vT+3}, 1, v{vT+5}
    v_add_u32 v{vT+7}, v{vT+7}, v{vT+4}
    v_xor_b32 v{vT+4}, s{s_wn}, v{vT+3}
    v_lshlrev_b32 v{vT+4}, 4, v{vT+4}
    v_lshlrev_b32 v{vT+3}, 14, v{vT+3}
    v_add3_u32 v{vT+7}, v{vT+7}, v{vT+4}, v{vT+3}
    v_and_b32 v{vT+3}, 8, v{vT+6}
    v_add_u32 v{vWR+6}, v{vT+7}, v{vT+3}
    """)
    e(f"""
    v_lshlrev_b32 v{vT}, 7, v{vT}
    v_lshrrev_b32 v{vT+2}, 1, v{vT+2}
    v_lshl_or_b32 v{vT+2}, v{vT+1}, 1, v{vT+2}""")
    for j in range(4):
        e(f"v_xor_b32 v{vT+3}, {j}, v{vT+2}\nv_lshlrev_b32 v{vT+3}, 5, v{vT+3}\nv_add3_u32 v{vT+3}, v{vT+3}, v{vT}, v{vT+6}\nv_accvgpr_write_b32 a{PARK+4+j}, v{vT+3}")
    e(f"""
    s_lshl_b32 s{t0}, s{s_tm}, 1
    s_add_u32 s{t0}, s{t0}, s{s_wm}
    s_mul_i32 s{t0}, s{t0}, {8*MT}
    s_lshr_b32 s{t1}, s{s_tn}, 4
    s_mul_i32 s{t1}, s{t1}, {56*1024}
    s_add_u32 s{t0}, s{t0}, s{t1}
    s_and_b32 s{t1}, s{s_tn}, 15
    s_lshl_b32 s{t1}, s{t1}, 1
    s_add_u32 s{t1}, s{t1}, s{s_wn}
    s_lshl_b32 s{t2}, s{t1}, 9
    s_add_u32 s{t2}, s{t2}, s{t0}
    s_lshl_b32 s{t1}, s{t1}, 8
    s_add_u32 s{t1}, s{t1}, s{t0}
    s_add_u32 s{t1}, s{t1}, {48*1024}
    v_lshlrev_b32 v{vT}, 4, v{vM}
    v_lshrrev_b32 v{vT+3}, 1, v{vQ}
    v_lshl_or_b32 v{vT+4}, v{vT+1}, 1, v{vT+3}
    v_mul_u32_u24 v{vT+5}, {MT}, v{vT+1}
    v_lshlrev_b32 v{vT+6}, 8, v{vT+3}
    v_add3_u32 v{vT+5}, v{vT+5}, v{vT+6}, v{vT}
    v_add_u32 v{vS2}, s{t2}, v{vT+5}
    v_mul_u32_u24 v{vT+5}, {MT}, v{vT+4}
    v_add3_u32 v{vS3}, v{vT+5}, v{vT}, s{t1}
    """)
    G = o.get("lead", 4); LB = o.get("lead_blk", 1); NB = 56 // LB
    e(f"""
    s_bfe_u32 s{t0}, s2, 0x20001
    s_lshl_b32 s{t0}, s{t0}, 2
    s_bfe_u32 s{t1}, s2, 0x20003
    s_add_u32 s{s_tm}, s{t0}, s{t1}
    s_lshr_b32 s{s_tn}, s2, 5
    s_lshl_b32 s{t1}, s{t1}, {max(lg(G) - 2, 0)}
    s_add_u32 s{t1}, s{t1}, s{s_tn}
    s_and_b32 s{s_r}, s{t1}, {G-1}
    s_and_b32 s{t3}, s2, 1
    v_lshlrev_b32 v{vT+2}, 11, v{vM}
    v_lshlrev_b32 v{vT+4}, 4, v{vT+4}
    s_lshl_b32 s{t0}, s{s_tm}, 18
    s_lshl_b32 s{t1}, s{s_w}, 16
    s_add_u32 s{t0}, s{t0}, s{t1}
    s_lshl_b32 s{t2}, s{s_tn}, 8
    s_lshl_b32 s{t1}, s{t3}, 7
    s_add_u32 s{t2}, s{t2}, s{t1}
    s_add_u32 s{t0}, s{t0}, s{t2}
    v_add3_u32 v{vT+2}, v{vT+2}, v{vT+4}, s{t0}
    v_accvgpr_write_b32 a{PARK+8}, v{vT+2}
    v_lshrrev_b32 v{vT}, 3, v{vLane}
    v_and_b32 v{vT+1}, 2, v{vT}
    v_and_b32 v{vT+2}, 7, v{vLane}
    v_xor_b32 v{vT+1}, v{vT+1}, v{vT+2}
    s_lshl_b32 s{t1}, s{s_wm}, 2
    v_xor_b32 v{vT+1}, s{t1}, v{vT+1}
    v_lshlrev_b32 v{vT+1}, 4, v{vT+1}
    v_lshlrev_b32 v{vT}, 11, v{vT}
    s_mul_i32 s{t0}, s{t3}, 1792
    s_lshl_b32 s{t1}, s{s_wm}, 3
    s_add_u32 s{t0}, s{t0}, s{t1}
    s_lshl_b32 s{t0}, s{t0}, 11
    s_add_u32 s{t0}, s{t0}, s{t2}
    v_add3_u32 v{vWk}, v{vT}, v{vT+1}, s{t0}
    v_xor_b32 v{vWg}, 0x80, v{vWk}
    s_lshl_b32 s{t0}, s{s_tm}, 2
    s_add_u32 s{t0}, s{t0}, s{s_w}
    s_mul_i32 s{t0}, s{t0}, {2*MT}
    s_mul_i32 s{t1}, s{t3}, {56*1024}
    s_add_u32 s{t0}, s{t0}, s{t1}
    v_lshl_add_u32 v{vT}, v{vLane}, 4, s{t0}
    v_accvgpr_write_b32 a{PARK+9}, v{vT}
    s_lshl_b32 s{t0}, s{s_tm}, 1
    s_add_u32 s{t0}, s{t0}, s{t3}
    s_lshl_b32 s{t0}, s{t0}, 11
    s_add_u32 s{t0}, s{t0}, {SF_OFF}
    v_bfe_u32 v{vT}, v{vLane}, 1, 4
    v_lshlrev_b32 v{vT}, 7, v{vT}
    v_and_b32 v{vT+1}, 1, v{vLane}
    v_lshlrev_b32 v{vT+1}, 2, v{vT+1}
    v_add3_u32 v{vT}, v{vT}, v{vT+1}, s{t0}
    v_accvgpr_write_b32 a{PARK+10}, v{vT}
    s_lshl_b32 s{t0}, s2, 12
    s_add_u32 s{t0}, s{t0}, s{s_m0}
    v_lshl_add_u32 v{vT+7}, v{vT+2}, 7, s{t0}
    s_lshl_b32 s{t0}, s2, 2
    s_cmp_lt_u32 s2, {NRS}
    s_cselect_b32 s{t0}, s{t0}, 256
    v_add_u32 v{vT+9}, s{t0}, v{vT+9}
    v_mov_b32 v{vT+6}, 1
    """)
    vPFA, vDbg, vOne = vT + 7, vT + 9, vT + 6
    vSW, vSH = vT + 5, vPF
    if G > 1:
        e(f"""
        v_lshrrev_b32 v{vT}, {lg(LB)}, v{vLane}
        v_subrev_u32 v{vT+1}, s{s_r}, v{vT}
        v_and_b32 v{vT+1}, {G-1}, v{vT+1}
        v_sub_u32 v{vT+2}, v{vT}, v{vT+1}
        v_add_u32 v{vT+2}, {G-1}, v{vT+2}
        v_cmp_eq_u32 vcc, 0, v{vT+1}
        v_add_u32 v{vT+3}, -1, v{vT}
        s_nop 0
        v_cndmask_b32 v{vT+3}, v{vT+3}, v{vT+2}, vcc
        v_cmp_le_u32 vcc, {NB}, v{vT+2}
        s_nop 1
        v_cndmask_b32 v{vT+3}, v{vT+3}, v{vT}, vcc
        v_cmp_gt_u32 vcc, s{s_r}, v{vT}
        v_and_b32 v{vT+1}, {LB-1}, v{vLane}
        s_nop 0
        v_cndmask_b32 v{vT+3}, v{vT+3}, v{vT}, vcc
        v_lshl_add_u32 v{vT}, v{vT+3}, {lg(LB)}, v{vT+1}
        """)
    else:
        e(f"v_mov_b32 v{vT}, v{vLane}")
    e(f"""
    v_lshlrev_b32 v{vT+1}, 10, v{vT}
    v_accvgpr_write_b32 a{PARK+11}, v{vT+1}
    s_lshl_b32 s{t1}, s{s_wn}, 6
    s_mul_i32 s{t0}, s{s_wn}, 112
    s_sub_u32 s{t0}, s{t0}, {224*48 - 48}
    v_and_b32 v{vT+1}, 15, v{vT}
    v_mul_u32_u24 v{vT+1}, 112, v{vT+1}
    v_and_b32 v{vT+2}, 0x30, v{vT}
    v_add3_u32 v{vT+1}, v{vT+1}, v{vT+2}, s{t1}
    v_cmp_gt_u32 vcc, 48, v{vT}
    v_mul_u32_u24 v{vT+2}, 224, v{vT}
    v_add_u32 v{vT+2}, s{t0}, v{vT+2}
    v_cndmask_b32 v{vT+1}, v{vT+2}, v{vT+1}, vcc
    v_lshlrev_b32 v{vSW}, 11, v{vT+1}
    """)
    s_pf = t3
    vCA, vDum = vT + 10, vT + 11
    e(f"s_getpc_b64 s[0:1]\ns_lshr_b32 s{t0}, s2, 3\ns_lshl_b32 s{t0}, s{t0}, 11\nv_lshl_add_u32 v{vCA}, v{vM}, 7, s{t0}")
    def code_touch(): return Op(f"global_load_dword v{vDum}, v{vCA}, s[0:1]", vm=True)
    e(f"s_lshl_b32 s{t0}, s2, 2\ns_add_u32 s{t0}, s{t0}, s{s_w}\ns_mul_i32 s{s_pf}, s{t0}, 7168")
    for p in seq[nfirst:npre]: emit_dma(p)
    e(f"v_add_u32 v{vW}, {128*7168}, v{vW}")
    wstep = f"v_add_u32 v{vW}, {64*7168}, v{vW}"
    def rd_x(t, mt, kk):
        xs = t % 3
        xb = vXR + kk + (2 if xs == 2 else 0); xo = xs * 32768 if xs < 2 else 0
        r = fx(t % 2, mt, kk)
        return Op(f"ds_read_b128 a[{r}:{r+3}], v{xb} offset:{xo + mt*2048}", lg=("x", t, mt, kk))
    def rd_w(t, j, kk):
        out = []
        for hi in range(2):
            r = fw(t % 2, j, kk) + 2 * hi
            out.append(Op(f"ds_read_b64_tr_b16 a[{r}:{r+1}], v{vWR+j} offset:{(t % 2)*32768 + kk*8192 + hi*1024}", lg=("w", t, j, kk)))
        return out
    started = set()
    def mf1(t, mt, j, kk):
        d = acc(mt, j)
        c = f"v[{d}:{d+3}]" if d in started else "0"
        started.add(d)
        A, B = fw(t % 2, j, kk), fx(t % 2, mt, kk)
        return Op(f"v_mfma_f32_16x16x32_bf16 v[{d}:{d+3}], a[{A}:{A+3}], a[{B}:{B+3}], {c}", nlg=[("w", t, j, kk), ("x", t, mt, kk)])
    def order_m():
        prs = []
        for mp in range(4):
            for n, j in enumerate(range(7)):
                prs += [(2*mp, j), (2*mp+1, j)] if n % 2 == 0 else [(2*mp+1, j), (2*mp, j)]
        return prs
    def order_n():
        prs = []
        for s in range(3):
            for mt in range(8):
                prs += [(mt, s), (mt, 3 + s)] if mt % 2 == 0 else [(mt, 3 + s), (mt, s)]
        prs += [(mt, 6) for mt in range(8)]
        return prs
    def step_seq(prs):
        out = []
        for n, (mt, j) in enumerate(prs):
            out += [(mt, j, 0), (mt, j, 1)] if (n % 2 == 0 or not o.get("kalt", True)) else [(mt, j, 1), (mt, j, 0)]
        return out
    def reads_for(t, sq):
        out = []; seen = set()
        for (mt, j, kk) in sq:
            if ("x", mt, kk) not in seen: seen.add(("x", mt, kk)); out.append(rd_x(t, mt, kk))
            if ("w", j, kk) not in seen: seen.add(("w", j, kk)); out += rd_w(t, j, kk)
        return out
    NS = 16
    seqs = [step_seq(order_m()) for t in range(NS)]
    seqs[15] = step_seq(order_n())
    q1 = o.get("q1", 6)
    GS = []
    for q in range(q1): GS += [(q, 0), (q, 1)]
    GS += [(q, 0) for q in range(q1, 14)] + [(q, 1) for q in range(q1, 14)]
    def slot_addr(g): return ((6 + g) % 10) * 16384
    nrl = [0]
    def dma2(g, k):
        q, hf = GS[g]
        v = vWk if hf else vWg
        sr = TW + nrl[0] % 8; nrl[0] += 1
        pre = [f"v_readlane_b32 s{sr}, v{vSW}, {4*q + k}", f"s_add_u32 m0, s{s_m0}, {slot_addr(g) + k*4096}"]
        if o.get("no_d") and g >= 10: return ([], Op("s_nop 0", vm=("d", g)))
        return (pre, Op(f"buffer_load_dwordx4 v{v}, s[{sD}:{sD+3}], s{sr} offen lds", vm=("d", g)))
    e.wait(nvm=[("x", 0), ("w", 0), "reset"]); e("s_barrier")
    e(sat("bar0"))
    r0 = reads_for(0, seqs[0])
    n_first = o.get("rd_first", 12)
    e(r0[:n_first])
    PB = o.get("pb", 56)
    posl = o.get("dma_pos") or [1, 3, 5, 14, 23, 32, 41, 50, 59, 68, 77, 84, 91, 98, 104, 110]
    left = seq[npre:]
    carry = [(2 + n * o.get("pro_every", 4), p) for n, p in enumerate(left)]
    assert not left or carry[-1][0] < PB - 1
    pf_steps = o.get("pf_steps", [1, 2, 3, 4, 5, 6, 7])
    pre2 = [(g, k) for g in range(10) for k in range(4)]
    for t in range(NS):
        fill = Fill()
        if t == 0:
            for n, r in enumerate(r0[n_first:]): fill.add(n // 2, r)
            fill.add(20, Op(f"buffer_store_dword v{vOne}, v{vDbg}, s[{sG}:{sG+3}], 0 offen sc1", vm=True))
        def put1(pos, p):
            if isinstance(p[0], list): fill.add(max(pos - 4, -1), p[0][0]); fill.add(pos - 1, p[0][1])
            else: fill.add(pos - 1, p[0])
            fill.add(pos, p[1])
            if len(p) > 2: fill.add(pos, p[2])
        for (pos, p) in carry: put1(pos, p)
        carry = []
        pb = PB if t < 15 else 0
        if t < 15:
            fill.add(pb - 1, [Op("", nvm=[("x", t + 1), ("w", t + 1)], nlg=[r0[-1].lg]), "s_barrier"])
        lst = []
        if t + 3 < NS: lst += [dma_x(t + 3, i) for i in range(NL)]
        if t + 2 < NS:
            lst += [dma_w(t + 2, i) for i in range(8)]
            lst[-1] = lst[-1] + (wstep,)
        if t + 3 < NS: lst += [dma_x(t + 3, i) for i in range(NL, 8)]
        pos = list(posl[:len(lst)])
        if t == 13:
            items = pre2[:8]; lst += [dma2(*x) for x in items]; pos += posl[8:16]
        if t == 14:
            items = pre2[8:24]; lst += [dma2(*x) for x in items]; pos += [1 + 5 * n for n in range(16)]
        if t == 15:
            fill.add(-1, "s_barrier")
            items = pre2[24:40]; lst += [dma2(*x) for x in items]; pos += [26 + 5 * n for n in range(16)]
        spf = o.get("spf")
        if spf and 1 <= t <= 56 * (128 // spf[1]) // spf[0]:
            for n in range(spf[0]):
                idx = (t - 1) * spf[0] + n
                fill.add(2 * n, f"s_buffer_load_dword s3, s[{sD}:{sD+3}], s{s_pf}" + (f" offset:{idx * spf[1]}" if False else ""))
                fill.add(2 * n, f"s_add_u32 s{s_pf}, s{s_pf}, {spf[1]}")
        if t in pf_steps:
            n = pf_steps.index(t)
            fill.add(pb + 6, f"s_mov_b32 s{t0}, {n << 20}")
            fill.add(pb + 7, Op(f"buffer_load_dword v{vDum}, v{vPFA}, s[{sD}:{sD+3}], s{t0} offen", vm=True))
        if t in o.get("ct_steps", [5, 10, 15]): fill.add(pb + 8, code_touch())
        for pp, p in zip(pos, lst):
            pp += pb
            if pp < 112: put1(pp, p)
            else: carry.append((pp - 112, p))
        if t + 1 < NS:
            rr = reads_for(t + 1, seqs[t + 1])
            span = 108 - pb
            p = pb
            for n, r in enumerate(rr): p = fill.place(max(p, pb + n * span // len(rr)), r, hi=110)
            fill.add(111, Op("", nlg=[rr[-1].lg]))
        fill.add(54, sat(f"t{t}a")); fill.add(110, sat(f"t{t}"))
        e.weave([mf1(t, *x) for x in seqs[t]], fill)
    assert not carry
    vWR2 = 1
    vH0, vH1, vPoll, vPD = 13, 0, 28, 29
    sC = t2
    e(f"""s_mov_b32 s{sC}, 0xbfb8aa3b
    s_mov_b32 s{sX}, s{sOUT}
    s_mov_b32 s{sX+1}, s{sOUT+1}
    v_and_b32 v{vT+6}, {NRS-1}, v{vLane}
    v_lshlrev_b32 v{vT+6}, 2, v{vT+6}""")
    e(Op(f"buffer_load_dword v{vT+7}, v{vT+6}, s[{sG}:{sG+3}], 0 offen sc1", vm="hs"))
    for j in range(4):
        e(f"v_accvgpr_read_b32 v{vWR2+j}, a{PARK+4+j}")
    e(f"v_accvgpr_read_b32 v{vH0}, a{PARK+9}\nv_accvgpr_read_b32 v{vPoll}, a{PARK+10}")
    for j in range(4):
        e(f"v_add_u32 v{vWR2+4+j}, 0x10000, v{vWR2+j}\nv_add_u32 v{vWR2+8+j}, 0x20000, v{vWR2+j}")
    e(f"v_min_u32 v{vT+4}, 1, v{vLane}\nv_xor_b32 v{vT+4}, 1, v{vT+4}\nv_accvgpr_write_b32 a{PARK+12}, v{vT+4}")
    e(f"v_add_u32 v{vH1}, {MT}, v{vH0}\nv_accvgpr_read_b32 v{vSH}, a{PARK+11}")
    def swiglu(g, u, dst, T):
        out = []
        for r in range(4): out.append(f"v_mul_f32 v{T+r}, s{sC}, v{g+r}")
        for r in range(4): out.append(f"v_exp_f32 v{T+r}, v{T+r}")
        for r in range(4): out.append(f"v_mul_f32 v{g+r}, v{g+r}, v{u+r}")
        for r in range(4): out.append(f"v_add_f32 v{T+r}, 1.0, v{T+r}")
        for r in range(4): out.append(f"v_rcp_f32 v{T+r}, v{T+r}")
        for r in range(4): out.append(f"v_mul_f32 v{g+r}, v{g+r}, v{T+r}")
        out.append(f"v_cvt_pk_bf16_f32 v{dst}, v{g}, v{g+1}")
        out.append(f"v_cvt_pk_bf16_f32 v{dst+1}, v{g+2}, v{g+3}")
        return out
    def hstore(r, vaddr, off, tag):
        return [f"s_mov_b32 s{t1}, {off}", "s_nop 0", f"v_permlane16_swap_b32 v{r}, v{r+2}", f"v_permlane16_swap_b32 v{r+1}, v{r+3}",
                Op(f"buffer_store_dwordx4 v[{r}:{r+3}], v{vaddr}, s[{sH}:{sH+3}], s{t1} offen sc1", vm=tag)]
    blocks = []
    for s in range(3):
        for mp in range(4):
            d = up(2 * mp, s)
            blocks.append(swiglu(gate(2*mp, s), up(2*mp, s), d, vT) + swiglu(gate(2*mp+1, s), up(2*mp+1, s), d + 2, vT) + hstore(d, vS2, 2*mp*MT + s*16384, ("hs", s)))
    for mq in range(2):
        d = mixed(4 * mq + 1); b = []
        for h in range(2):
            A, B = mixed(4*mq + 2*h), mixed(4*mq + 2*h + 1)
            b += [f"v_permlane32_swap_b32 v{A+r}, v{B+r}" for r in range(4)]
            b += swiglu(A, B, d + 2 * h, vT)
        blocks.append(b + hstore(d, vS3, 4*mq*MT, ("hs", 3)))
    def flag(s):
        return [f"v_mov_b32 v{vT+4}, {s+1}", Op(f"buffer_store_dword v{vT+4}, v{vFl}, s[{sH}:{sH+3}], 0 offen sc1", nvm=[("hs", s)], vm=("fl", s))]
    spins = []
    def poll(tag): return Op(f"buffer_load_dword v{vPD}, v{vPoll}, s[{sH}:{sH+3}], 0 offen sc1", vm=tag)
    nlab = [0]
    def check(tag, n, reg=vPD, ld=None, cmp=None, inline=None):
        lab = f"L_spin{nlab[0]}"; nlab[0] += 1
        cmp = cmp or f"v_cmp_gt_u32 vcc, {n}, v{reg}"
        if o.get("inline", True) if inline is None else inline:
            return [Op(cmp, nvm=[tag]), f"""s_cbranch_vccz {lab}_ret
            s_mov_b32 s{t3}, 0x40000
            {lab}_loop:
            {ld or poll(0).text}
            s_sub_u32 s{t3}, s{t3}, 1
            s_cmp_eq_u32 s{t3}, 0
            s_waitcnt vmcnt(0)
            s_cbranch_scc1 {lab}_ret
            {cmp}
            s_cbranch_vccnz {lab}_loop
            {lab}_ret:"""]
        spins.append((lab, ld or poll(0).text, cmp))
        return [Op(cmp, nvm=[tag]), f"s_cbranch_vccnz {lab}", f"{lab}_ret:"]
    def hreg(q, k, mi):
        s = q % 11
        r = (48 + 32 * s if s < 6 else 96 + 32 * (s - 6)) + (k * 2 + mi) * 4
        return f"{'a' if s < 6 else 'v'}[{r}:{r+3}]"
    def hload(q, k, mi):
        sr = TH + (4 * q + k) % 8
        pre = [f"v_readlane_b32 s{sr}, v{vSH}, {4*q + k}"] if mi == 0 else []
        if o.get("no_h") and q >= 2: return ([], Op("s_nop 0", vm=("h", q, k)))
        return (pre, Op(f"buffer_load_dwordx4 {hreg(q, k, mi)}, v{vH1 if mi else vH0}, s[{sH}:{sH+3}], s{sr} offen sc1", vm=("h", q, k)))
    hl = [(q, k, mi) for q in range(14) for k in range(4) for mi in range(2)]
    at = {n: [] for n in range(-1, 14)}
    assert o.get("b_hs", 5) < o.get("b_fl0", 6)
    at[o.get("b_fl0", 6)] += flag(0)
    if "b_fl2" in o: at[o["b_fl2"]] += flag(2)
    at[o.get("b_hs", 5)] += check("hs", 0, reg=vT + 7, ld=f"buffer_load_dword v{vT+7}, v{vT+6}, s[{sG}:{sG+3}], 0 offen sc1", cmp=f"v_cmp_ne_u32 vcc, 1, v{vT+7}", inline=False)
    at[o.get("b_poll", 8)].append(poll("pA"))
    TWO = o.get("two", True)
    if not TWO: at[o.get("b_fl1", 10)] += flag(1)
    bchk = o.get("b_chk", 11)
    at[bchk] += [lambda: sat("chkA0")] + check("pA", 1)
    nh0 = o.get("nh0", 8)
    for x in hl[:nh0]:
        p = hload(*x); at[bchk] += p[0] + [p[1]]
    at[bchk].append(lambda: sat("chkA1"))
    e("s_nop 1")
    e(at[-1])
    for n, b in enumerate(blocks):
        e(b); e(sat(f"b{n}")); e(at[n])
    e(sat("epi"))
    def acc2(hf, mi, j): return 32 + ((hf * 2 + mi) * 4 + j) * 4
    def fw2(u, k): return ((u % 3) * 4 + k) * 4
    NU = 4 * len(GS)
    def rd2(u):
        g, j = divmod(u, 4)
        out = []
        for k in range(4):
            ad = slot_addr(g) + k * 4096
            for hi in range(2):
                r = fw2(u, k) + 2 * hi
                out.append(Op(f"ds_read_b64_tr_b16 a[{r}:{r+1}], v{vWR2 + 4*(ad >> 16) + j} offset:{(ad & 0xffff) + hi*512}", lg=("r", u)))
        return out
    started.clear()
    def mf2(u):
        g, j = divmod(u, 4); q, hf = GS[g]
        out = []
        for mi in range(2):
            for k in (range(4) if mi == 0 else range(3, -1, -1)):
                d = acc2(hf, mi, j)
                c = f"v[{d}:{d+3}]" if d in started else "0"
                started.add(d)
                A = fw2(u, k)
                out.append(Op(f"v_mfma_f32_16x16x32_bf16 v[{d}:{d+3}], a[{A}:{A+3}], {hreg(q, k, mi)}, {c}", nvm=[("h", q, k if (u < o.get("finewait", 4)) else 3)], nlg=[("r", u)]))
        return out
    first_g = {}; last_g = {}
    for g, (q, hf) in enumerate(GS): first_g.setdefault(q, g); last_g[q] = g
    gII = max(g for g in range(len(GS)) if GS[g][1] == 0) + 1
    BF16X = o.get("xbf16", False)
    vXO, vXI, vXFo, vXFi, vO = 20, 21, 22, 23, vS2
    uB, uC = o.get("uB", 2), o.get("uC", 14)
    dchk = o.get("dchk", 7)
    work = []
    hq = hl[nh0:]; dq = [(g, k) for g in range(10, len(GS)) for k in range(4)]
    def h_earliest(q, k):
        s = min((4 * q + k + (G - 1) * LB) >> 4, 3)
        x = 0 if s == 0 else (uB + dchk + 1 if (s == 1 and not TWO) else uC + dchk + 1)
        if q >= 11: x = max(x, 4 * (last_g[q - 11] + 1))
        return x
    def h_dead(q): return 4 * first_g[q] - o.get("h_lead", 8)
    def d_earliest(g): return 4 * (g - 10) + 6
    def d_dead(g): return 4 * g - 2 - o.get("d_lead", 8) - (o.get("d_lead3", 12) if g >= gII else 0)
    items = [(h_dead(q), n, "h", (q, k, mi), h_earliest(q, k)) for n, (q, k, mi) in enumerate(hq)]
    items += [(d_dead(g), 1000 + n, "d", (g, k), d_earliest(g)) for n, (g, k) in enumerate(dq)]
    items.sort()
    rate = o.get("rate", 2)
    ust = 4 * gII + 1 + o.get("x_delay", 0)
    nxs = 4 if BF16X else 8
    ufl = ust + o.get("x_flag", 20)
    upl = ufl + o.get("x_poll", 4)
    uck = upl + o.get("x_chk", 5)
    def give_ops(k):
        if BF16X:
            d = acc2(0, 0, 0) + 8 * k
            pre = [f"v_cvt_pk_bf16_f32 v{d+r}, v{d+2*r}, v{d+2*r+1}" for r in range(4)]
        else:
            d = acc2(0, 0, 0) + 4 * k; pre = []
        if k == 4: pre.append(f"v_add_u32 v{vXO}, 0x1000, v{vXO}")
        return (pre, Op(f"buffer_store_dwordx4 v[{d}:{d+3}], v{vXO}, s[{sH}:{sH+3}], 0 offen offset:{(k % 4)*1024} sc1", vm=("gs", k)))
    def recv_ops(k):
        d = acc2(0, 0, 0) + (8 * k if BF16X else 4 * k)
        pre = [f"v_add_u32 v{vXI}, 0x1000, v{vXI}"] if k == 4 else []
        return (pre, Op(f"buffer_load_dwordx4 v[{d}:{d+3}], v{vXI}, s[{sH}:{sH+3}], 0 offen offset:{(k % 4)*1024} sc1", vm=("rc", k)))
    xflag = [Op(f"buffer_store_dword v{vT+6}, v{vXFo}, s[{sH}:{sH+3}], 0 offen sc1", nvm=[("gs", nxs - 1)], vm="xf")]
    xpoll = Op(f"buffer_load_dword v{vPD}, v{vXFi}, s[{sH}:{sH+3}], 0 offen sc1", vm="pX")
    def xcheck(): return check("pX", 0, ld=xpoll.text, cmp=f"v_cmp_gt_u32 vcc, v{vT+7}, v{vPD}")
    setup2 = [f"v_accvgpr_read_b32 v{vXFo}, a{PARK+0}", f"v_accvgpr_read_b32 v{vXFi}, a{PARK+1}", f"v_accvgpr_read_b32 v{vXO}, a{PARK+2}",
              f"v_accvgpr_read_b32 v{vXI}, a{PARK+3}", f"v_accvgpr_read_b32 v{vT+7}, a{PARK+12}", f"v_mov_b32 v{vT+6}, 1", f"v_accvgpr_read_b32 v{vO}, a{PARK+8}", ""]
    e.wait(nvm=[("d", 0)]); e("s_barrier")
    e(rd2(0)); e(rd2(1))
    gs_left = list(range(nxs)); rc_left = list(range(nxs)); xstate = 0
    ufl2, ufl3 = o.get("u_fl2", 1), o.get("u_fl3", 6)
    assert ufl3 < uC
    prev_fill = None; prev_m = None
    for u in range(NU):
        fill = Fill(); hoist = []
        g, j = divmod(u, 4)
        if j == 2 and g + 1 < len(GS):
            fill.add(-1, [Op("", nvm=[("d", g + 1)], nlg=[("r", u)]), "s_barrier"])
        if u + 2 < NU:
            for k, r in enumerate(rd2(u + 2)): fill.add(k, r)
        p = 0
        def put(pre, op):
            nonlocal p
            lo = p
            for x in pre:
                if x.startswith("v_readlane"):
                    if prev_fill is not None and len(hoist) < 3: hoist.append(x)
                    else: lo = max(lo, fill.place(0, x, hi=6) + 3)
                else:
                    p = fill.place(p, x, hi=6); lo = max(lo, p + 1)
            p = fill.place(min(lo, 7), op, hi=7)
            p = min(p + o.get("vsp", 2), 7)
        if u == ufl2 and "b_fl2" not in o and not TWO: put(flag(2)[:1], flag(2)[1])
        if u == ufl3: put(flag(3)[:1], flag(3)[1])
        if u == uB and not TWO: put([], poll("pB"))
        if u == uC: put([], poll("pC"))
        if u in o.get("ct_units", [30, 70]): put([], code_touch())
        if 20 <= u < 28: fill.place(5, setup2[u - 20], hi=7)
        n = 0
        if u >= ust and gs_left:
            for _ in range(1 if BF16X else 2):
                put(*give_ops(gs_left.pop(0))); n += 1
        if xstate == 3 and rc_left:
            for _ in range(2):
                put(*recv_ops(rc_left.pop(0))); n += 1
        rt = rate if isinstance(rate, int) else int((u + 1) * rate) - int(u * rate)
        i = 0
        blocked = set()
        while n < o.get("rate_max", 3) and i < len(items):
            dl, _, kind, x, ea = items[i]
            if n >= rt and dl > u: break
            if ea <= u and kind not in blocked:
                items.pop(i); put(*(hload(*x) if kind == "h" else dma2(*x))); n += 1
            else:
                blocked.add(kind); i += 1
        if u == uB + dchk and not TWO: fill.add(7, check("pB", 2))
        if u == uC + dchk: fill.add(7, check("pC", 4))
        if xstate == 0 and u >= ufl and not gs_left: fill.add(7, xflag); xstate = 1
        elif xstate == 1 and u >= upl: fill.add(7, xpoll); xstate = 2
        elif xstate == 2 and u >= uck: fill.add(7, xcheck()); xstate = 3
        if u == 4 * 2 * q1 - 1: fill.add(7, sat("pI"))
        if u == 4 * gII - 1: fill.add(7, sat("pII"))
        fill.add(7, sat(f"u{u}"))
        if prev_fill is not None:
            for x in hoist: prev_fill.place(3, x, hi=5)
            e.weave(prev_m, prev_fill)
        prev_fill, prev_m = fill, mf2(u)
    e.weave(prev_m, prev_fill)
    assert not items, items
    e(sat("pIII"))
    e("s_nop 7")
    for k in gs_left: p = give_ops(k); e(p[0]); e(p[1])
    e(sat("x0"))
    if xstate == 0: e(xflag); xstate = 1
    e(sat("x1"))
    if xstate == 1: e(xpoll); xstate = 2
    if xstate == 2: e(xcheck())
    e(sat("x2"))
    for k in rc_left: p = recv_ops(k); e(p[0]); e(p[1])
    if "x3" in STAT: e("s_waitcnt vmcnt(0)"); e(sat("x3"))
    for mi in range(2):
        for jp in range(2):
            d0, g0 = acc2(1, mi, 2 * jp), acc2(0, mi, 2 * jp)
            if BF16X:
                e.wait(nvm=[("rc", mi * 2 + jp)])
                for r in range(4):
                    e(f"v_lshlrev_b32 v{g0+4}, 16, v{g0+r}\nv_and_b32 v{g0+5}, 0xffff0000, v{g0+r}\nv_add_f32 v{d0+2*r}, v{d0+2*r}, v{g0+4}\nv_add_f32 v{d0+2*r+1}, v{d0+2*r+1}, v{g0+5}")
            else:
                e.wait(nvm=[("rc", mi * 4 + 2 * jp + 1)])
                for r in range(8): e(f"v_add_f32 v{d0+r}, v{d0+r}, v{g0+r}")
            r = g0
            e(f"""v_cvt_pk_bf16_f32 v{r}, v{d0}, v{d0+1}
            v_cvt_pk_bf16_f32 v{r+1}, v{d0+2}, v{d0+3}
            v_cvt_pk_bf16_f32 v{r+2}, v{d0+4}, v{d0+5}
            v_cvt_pk_bf16_f32 v{r+3}, v{d0+6}, v{d0+7}
            s_mov_b32 s{t0}, {mi*16*2048}
            s_nop 0
            v_permlane16_swap_b32 v{r}, v{r+2}
            v_permlane16_swap_b32 v{r+1}, v{r+3}""")
            e(Op(f"buffer_store_dwordx4 v[{r}:{r+3}], v{vO}, s[{sX}:{sX+3}], s{t0} offen offset:{jp*64} {o.get('out_aux', 'sc1')}", vm=True))
    e(sat("x4"))
    if ST:
        e("s_waitcnt vmcnt(0)")
        k = nst[0]; assert k <= 14, k
        nst[0] = 14; e(stamp()); e(stamp(True))
        e(f"""s_waitcnt lgkmcnt(0)
        s_cmp_lg_u32 s{s_w}, 0
        s_cbranch_scc1 L_end
        s_lshl_b32 s3, s2, 7
        s_add_u32 s3, s3, {STAMP_OFF}
        v_mov_b32 v28, s3
        s_mov_b64 exec, 1""")
        for i in range(16):
            r = 64 + 2 * (i if (i < k or i >= 14) else 14)
            e(f"v_mov_b32 v30, s{r}\nv_mov_b32 v31, s{r+1}\nglobal_store_dwordx2 v28, v[30:31], s[{sH}:{sH+1}] offset:{8*i}\ns_nop 1")
        e("s_waitcnt vmcnt(0)")
    e("L_end:\ns_endpgm")
    for lab, ld, cmp in spins:
        e(f"""{lab}:
        s_mov_b32 s{t3}, 0x40000
        {lab}_loop:
        {ld}
        s_sub_u32 s{t3}, s{t3}, 1
        s_cmp_eq_u32 s{t3}, 0
        s_waitcnt vmcnt(0)
        s_cbranch_scc1 {lab}_ret
        {cmp}
        s_cbranch_vccnz {lab}_loop
        s_branch {lab}_ret""")
    return descriptor(name, 512, 256)

def build(fn, **o):
    a = Asm()
    d = gen(a, NAME, o)
    a(".fill 8192, 4, 0xbf800000")
    open(fn, "w").write(wrap([(NAME, 256, 256, 163840)], a.text(), [d]))

if __name__ == "__main__":
    build("k3.s")
    build("k3_st.s", stamps=True)
```

```python
from gen3 import *
B = dict(u_fl3=0, uC=12, b_chk=13, b_poll=11, nh0=16, ct_steps=[], ct_units=[], lead=1, ticket=True)
build("f_q8bf.s", q1=8, rate=2, xbf16=True, x_flag=10, **B)
build("f_q6bf.s", q1=6, rate=2, xbf16=True, x_flag=12, **B)
build("f_q4bf.s", q1=4, rate=2, xbf16=True, x_flag=14, x_poll=8, **B)
build("f_q4.s", q1=4, rate=2, x_flag=20, x_poll=6, **B)
```

```python
import sys, math
from asmlib import *

MT = 112 * 1024
XCH_OFF = 0x1000000
SF_OFF = 0x1800000
XF_OFF = 0x1810000
WS_BYTES = 0x2000000
STAMP_OFF = 0x8000000
lg = lambda v: int(math.log2(v))

class Cnt:
    def __init__(self, mx, expect): self.n = 0; self.done = 0; self.tag = {}; self.mx = mx; self.cnt = {}; self.expect = expect
    def issue(self, tag):
        self.n += 1
        if tag is not True:
            self.tag[tag] = self.n; self.cnt[tag] = self.cnt.get(tag, 0) + 1
    def need(self, tags):
        k = 0
        for t in tags:
            assert t in self.tag, t
            assert self.cnt[t] == self.expect(t), (t, self.cnt[t])
            k = max(k, self.tag[t])
        if k <= self.done: return None
        c = min(self.n - k, self.mx)
        self.done = self.n - c
        return c

def exp_vm(t):
    if isinstance(t, str): return 1
    if t[0] == "hs": return 4 if t[1] < 3 else 2
    return {"x": 8, "w": 8, "d": 4, "h": 2}.get(t[0], 1)
def exp_lg(t): return {"x": 1, "w": 2, "r": 8}[t[0]]

class Op:
    def __init__(self, text, vm=None, lg=None, nvm=(), nlg=(), cost=4):
        self.text, self.vm, self.lg, self.nvm, self.nlg, self.cost = text, vm, lg, nvm, nlg, cost

class Em:
    def __init__(self, a): self.a = a; self.vm = Cnt(62, exp_vm); self.lg = Cnt(14, exp_lg)
    def wait(self, nvm=(), nlg=()):
        v = self.vm.need(nvm); l = self.lg.need(nlg)
        s = (f" vmcnt({v})" if v is not None else "") + (f" lgkmcnt({l})" if l is not None else "")
        if s: self.a("s_waitcnt" + s)
    def __call__(self, x):
        if callable(x) and not isinstance(x, Op): x = x()
        if isinstance(x, str): self.a(x); return
        if isinstance(x, (list, tuple)):
            for y in x: self(y)
            return
        self.wait(x.nvm, x.nlg)
        if x.text.endswith(" lds") and " m0," in self.a.lines[-1]: self.a("s_nop 0")
        if x.text.startswith("buffer_"):
            so = x.text.split("], ")[-1].split()[0]
            n = 0
            for l in reversed(self.a.lines[-6:]):
                if l.strip().startswith(f"v_readlane_b32 {so},"):
                    if n < 5: self.a(f"s_nop {4 - n}")
                    break
                if not l.endswith(":"): n += 1
        if x.text: self.a(x.text)
        if x.vm is not None: self.vm.issue(x.vm)
        if x.lg is not None: self.lg.issue(x.lg)
    def weave(self, mfmas, fill):
        self(fill.get(-1, []))
        for i, m in enumerate(mfmas):
            self(m); self(fill.get(i, []))
        for k in fill: assert k < len(mfmas), k

class Fill(dict):
    def add(self, p, x): self.setdefault(p, []).append(x)
    def load(self, p): return len([x for x in self.get(p, []) if x != ""])
    def place(self, p, x, cap=2, hi=10**9):
        while self.load(p) >= cap and p < hi: p += 1
        self.add(p, x); return p

def gen(a, name, o):
    e = Em(a)
    ST = o.get("stamps"); nst = [0]
    def stamp(real=False):
        if not ST or nst[0] >= 16: return ""
        r = 64 + 2 * nst[0]; nst[0] += 1
        return f"s_mem{'real' if real else ''}time s[{r}:{r+1}]"
    STAT = o.get("st_at", ["iss", "bar0", "t3", "t7", "t11", "t15", "chkA0", "chkA1", "epi", "pI", "pII", "pIII"])
    def sat(key):
        if key not in STAT: return ""
        if o.get("both"): return stamp(True) + "\n" + stamp(False)
        return stamp(o.get("real", False))
    kernel_begin(a, name)
    sX, sW, sH, sG, sD = 4, 8, 12, 60, 96
    sOUT = 100
    s_w, s_wm, s_wn, s_tm, s_tn, s_r, s_m0, s_mix = 16, 17, 18, 19, 20, 21, 22, 23
    sxo, sxm, swo, swm = 24, 32, 40, 48
    TW, TH = 24, 40
    t0, t1, t2, t3 = 56, 57, 58, 59
    vX, vW, vXR, vWR, vS2, vS3, vPF, vWg, vWk = 1, 2, 3, 7, 14, 15, 16, 17, 18
    vFl = 19
    vT = 20
    PARK = 240
    def gate(mt, s): return 32 + 64 * s + 4 * mt
    def up(mt, s): return 64 + 64 * s + 4 * mt
    def mixed(mt): return 224 + 4 * mt
    def acc(mt, j): return gate(mt, j) if j < 3 else (up(mt, j - 3) if j < 6 else mixed(mt))
    def fx(s, mt, kk): return s * 120 + (mt * 2 + kk) * 4
    def fw(s, j, kk): return s * 120 + 64 + (j * 2 + kk) * 4
    vLane, vQ, vM = 0, vT + 10, vT + 11
    e(stamp(True)); e(stamp())
    e(f"""
    s_cmp_ge_u32 s2, 256
    s_cbranch_scc1 L_end
    s_load_dwordx4 s[{sX}:{sX+3}], s[0:1], 0
    s_load_dwordx4 s[{sH}:{sH+3}], s[0:1], 16
    s_load_dwordx4 s[{sG}:{sG+3}], s[0:1], 40
    s_load_dwordx2 s[{sOUT}:{sOUT+1}], s[0:1], 32
    v_lshrrev_b32 v{vT}, 6, v0
    s_nop 0
    v_readfirstlane_b32 s{s_w}, v{vT}""")
    if o.get("ticket"):
        e(f"""
        s_getreg_b32 s{t0}, hwreg(HW_REG_HW_ID, 13, 2)
        s_getreg_b32 s{t1}, hwreg(HW_REG_XCC_ID, 0, 3)
        s_lshl_b32 s{t2}, s{t1}, 2
        s_add_u32 s{t2}, s{t2}, s{t0}
        s_lshl_b32 s{t2}, s{t2}, 3
        s_add_u32 s{t2}, s{t2}, 4
        s_mov_b32 s{t3}, 1
        v_mov_b32 v{vT+1}, 0
        s_cmp_lg_u32 s{s_w}, 0
        s_waitcnt lgkmcnt(0)
        s_cbranch_scc1 L_tk_wait
        s_atomic_add s{t3}, s[{sG}:{sG+1}], s{t2} glc
        s_waitcnt lgkmcnt(0)
        v_mov_b32 v{vT+2}, s{t3}
        ds_write_b32 v{vT+1}, v{vT+2}
        s_waitcnt lgkmcnt(0)
        L_tk_wait:
        s_barrier
        ds_read_b32 v{vT+2}, v{vT+1}
        s_waitcnt lgkmcnt(0)
        v_readfirstlane_b32 s{t3}, v{vT+2}
        s_barrier
        s_and_b32 s{t3}, s{t3}, 7
        s_lshl_b32 s{t0}, s{t0}, 3
        s_add_u32 s{t0}, s{t0}, s{t3}
        s_lshl_b32 s{t0}, s{t0}, 3
        s_add_u32 s2, s{t0}, s{t1}
        """)
    e(f"""
    s_getpc_b64 s[{t2}:{t3}]
    s_lshr_b32 s{t1}, s2, 3
    v_and_b32 v{vM}, 15, v0
    s_lshl_b32 s{t0}, s{t1}, 11
    v_lshl_add_u32 v{vT+1}, v{vM}, 7, s{t0}""")
    e(Op(f"global_load_dword v{vPF}, v{vT+1}, s[{t2}:{t3}]", vm=True))
    e(f"""
    v_lshlrev_b32 v{vT+9}, 8, v0
    v_and_b32 v{vLane}, 63, v0
    s_and_b32 s{s_tm}, s{t1}, 7
    s_lshr_b32 s{t3}, s{t1}, 3
    s_and_b32 s{t0}, s2, 7
    s_lshl_b32 s{t0}, s{t0}, 2
    s_add_u32 s{s_tn}, s{t0}, s{t3}
    s_and_b32 s{s_wm}, s{s_w}, 1
    s_lshr_b32 s{s_wn}, s{s_w}, 1
    v_lshrrev_b32 v{vQ}, 4, v{vLane}
    s_lshl_b32 s{t0}, s{s_wm}, 2
    v_or_b32 v{vT+3}, s{t0}, v{vQ}
    v_and_b32 v{vT+2}, 7, v{vLane}
    v_xor_b32 v{vT+1}, v{vT+3}, v{vT+2}
    v_lshlrev_b32 v{vT+1}, 4, v{vT+1}
    v_lshrrev_b32 v{vT+2}, 3, v{vLane}
    v_lshlrev_b32 v{vT+2}, 11, v{vT+2}
    s_lshl_b32 s{t1}, s{s_tm}, 19
    v_add3_u32 v{vX}, v{vT+1}, v{vT+2}, s{t1}
    v_lshl_or_b32 v{vT+1}, v{vT+3}, 1, s{s_wn}
    v_xor_b32 v{vT+1}, v{vT+1}, v{vM}
    v_lshlrev_b32 v{vT+1}, 4, v{vT+1}
    v_mul_u32_u24 v{vT+2}, 7168, v{vQ}
    s_mul_i32 s{t1}, s{s_tn}, 224
    s_and_b32 s{t1}, s{t1}, 0xffffffc0
    v_add3_u32 v{vW}, v{vT+1}, v{vT+2}, s{t1}
    s_lshl_b32 s{t0}, s{t3}, 13
    s_lshl_b32 s{s_m0}, s{s_w}, 10
    s_or_b32 s{sxm}, s{t0}, s{s_m0}
    s_lshl_b32 s{sxo}, s{sxm}, 4
    s_xor_b32 s{sxm+1}, s{sxm}, 0x1000
    s_lshl_b32 s{sxo+1}, s{sxm+1}, 4
    s_lshr_b32 s{t1}, s{s_tm}, 1
    s_lshl_b32 s{t1}, s{t1}, 12
    s_and_b32 s{t0}, s{s_tm}, 1
    s_lshl_b32 s{t0}, s{t0}, 10
    s_or_b32 s{t0}, s{t0}, s{t1}
    s_lshl_b32 s{t1}, s{s_wm}, 11
    s_or_b32 s{t0}, s{t0}, s{t1}
    s_lshl_b32 s{t2}, s{s_wn}, 14
    s_mul_i32 s{swo}, s{t0}, 28
    s_or_b32 s{swm}, s{t0}, s{t2}""")
    for i in range(2, 8):
        e(f"s_xor_b32 s{sxm+i}, s{sxm}, {i << 12}\ns_lshl_b32 s{sxo+i}, s{sxm+i}, 4")
    for i in range(1, 8):
        c = ((i >> 1) << 12) | ((i & 1) << 10)
        e(f"s_xor_b32 s{t1}, s{t0}, {c}\ns_mul_i32 s{swo+i}, s{t1}, 28\ns_or_b32 s{swm+i}, s{t1}, s{t2}")
    vW1 = vT + 8
    e(f"""
    v_add_u32 v{vW1}, {64*7168}, v{vW}
    s_cmp_eq_u32 s{s_wn}, 0
    s_mov_b32 s{sW+2}, {1024*7168}
    s_mov_b32 s{sW+3}, 0x20000
    s_waitcnt lgkmcnt(0)
    s_cselect_b32 s{sW}, s{sX+2}, s{sH}
    s_cselect_b32 s{sW+1}, s{sX+3}, s{sH+1}
    s_mov_b32 s{sX+2}, {2048*2048}
    s_mov_b32 s{sX+3}, 0x20000
    """)
    XB = 65536
    NL, NLW = 2, 1
    def dma_x(t, i):
        return (f"s_add_u32 m0, s{sxm+i}, {XB + (t % 3) * 32768 - t * 128}",
                Op(f"buffer_load_dwordx4 v{vX}, s[{sX}:{sX+3}], s{sxo+i} offen offset:{t*128} lds", vm=("x", t)))
    def dma_w(t, i, v=None):
        aux = o.get("w_aux", "nt") if i < o.get("w_aux_n", NLW) else ""
        return (f"s_add_u32 m0, s{swm+i}, {(t % 2) * 32768}",
                Op(f"buffer_load_dwordx4 v{v or vW}, s[{sW}:{sW+3}], s{swo+i} offen {aux} lds", vm=("w", t)))
    def emit_dma(p): e(p[0]); e(p[1])
    def mix(p, q):
        out = []; p = list(p); q = list(q)
        while p or q:
            if p: out.append(p.pop(0))
            if q: out.append(q.pop(0))
        return out
    lead0 = [dma_x(0, i) for i in range(NL)] + [dma_w(0, i) for i in range(NLW)]
    lead1 = [dma_x(1, i) for i in range(NL)] + [dma_w(1, i, vW1) for i in range(NLW)]
    lead2 = [dma_x(2, i) for i in range(NL)]
    rest0 = mix([dma_w(0, i) for i in range(NLW, 8)], [dma_x(0, i) for i in range(NL, 8)])
    rest1 = mix([dma_w(1, i, vW1) for i in range(NLW, 8)], [dma_x(1, i) for i in range(NL, 8)])
    rest2 = [dma_x(2, i) for i in range(NL, 8)]
    mode = o.get("pro", 2)
    if mode == 1: seq = lead0 + lead1 + lead2 + rest0 + rest1 + rest2; n0 = len(lead0 + lead1 + lead2 + rest0)
    elif mode == 2: seq = lead0 + lead1 + rest0 + rest1 + lead2 + rest2; n0 = len(lead0 + lead1 + rest0)
    elif mode == 3: seq = lead0 + rest0 + lead1 + lead2 + rest1 + rest2; n0 = len(lead0 + rest0)
    npre = n0 + o.get("pro_extra", 8)
    nfirst = o.get("pro_first", 8)
    for p in seq[:nfirst]: emit_dma(p)
    e(sat("iss"))
    e(f"""
    s_mov_b32 s{sD}, s{sH+2}
    s_mov_b32 s{sD+1}, s{sH+3}
    s_mov_b32 s{sD+2}, {3584*2048}
    s_mov_b32 s{sD+3}, 0x20000
    s_mov_b32 s{sH}, s{sG+2}
    s_mov_b32 s{sH+1}, s{sG+3}
    s_mov_b32 s{sH+2}, {WS_BYTES}
    s_mov_b32 s{sH+3}, 0x20000
    s_mov_b32 s{sG+2}, 256
    s_mov_b32 s{sG+3}, 0x20000
    """)
    NRS = o.get("nrs", 8)
    e(f"""
    s_lshl_b32 s{t0}, s{s_tm}, 1
    s_add_u32 s{t0}, s{t0}, s{s_wm}
    s_lshl_b32 s{t0}, s{t0}, 5
    s_add_u32 s{t0}, s{t0}, s{s_tn}
    s_lshl_b32 s{t0}, s{t0}, 7
    s_lshl_b32 s{t1}, s{s_wn}, 2
    s_add_u32 s{t0}, s{t0}, s{t1}
    s_add_u32 s{t0}, s{t0}, {SF_OFF}
    s_xor_b32 s{t1}, s2, 1
    s_lshl_b32 s{t1}, s{t1}, 2
    s_add_u32 s{t1}, s{t1}, s{s_w}
    s_lshl_b32 s{t2}, s{t1}, 7
    s_add_u32 s{t2}, s{t2}, {XF_OFF}
    v_lshlrev_b32 v{vT}, 25, v{vLane}
    v_add_u32 v{vFl}, s{t0}, v{vT}
    v_add_u32 v{vT+1}, s{t2}, v{vT}
    v_accvgpr_write_b32 a{PARK+0}, v{vT+1}
    s_lshl_b32 s{t0}, s2, {15 - lg(NRS // 8)}
    s_lshr_b32 s{t3}, s{s_m0}, {lg(NRS // 8)}
    s_lshl_b32 s{t3}, s{t3}, 3
    s_add_u32 s{t0}, s{t0}, s{t3}
    s_cmp_lt_u32 s2, {NRS}
    s_cselect_b32 s{t0}, s{t0}, {WS_BYTES}
    s_add_u32 s{t0}, s{t0}, {SF_OFF}
    v_and_b32 v{vT+2}, {64 // (NRS // 8) - 1}, v{vLane}
    v_lshl_add_u32 v{vT+2}, v{vT+2}, 7, s{t0}
    v_mov_b32 v{vT+4}, 0
    v_mov_b32 v{vT+5}, 0""")
    e(Op(f"buffer_store_dwordx2 v[{vT+4}:{vT+5}], v{vT+2}, s[{sH}:{sH+3}], 0 offen sc1", vm="reset"))
    e(f"""
    s_xor_b32 s{t2}, s{t2}, 512
    v_add_u32 v{vT+1}, s{t2}, v{vT}
    v_accvgpr_write_b32 a{PARK+1}, v{vT+1}
    v_lshlrev_b32 v{vT+4}, 4, v{vLane}
    s_lshl_b32 s{t1}, s{t1}, 13
    s_add_u32 s{t1}, s{t1}, {XCH_OFF}
    v_add_u32 v{vT+1}, s{t1}, v{vT+4}
    v_accvgpr_write_b32 a{PARK+2}, v{vT+1}
    v_xor_b32 v{vT+1}, 0x8000, v{vT+1}
    v_accvgpr_write_b32 a{PARK+3}, v{vT+1}
    """)
    e(f"""
    v_lshrrev_b32 v{vT+2}, 1, v{vM}
    v_xor_b32 v{vT+2}, v{vT+2}, v{vQ}
    v_lshlrev_b32 v{vT+2}, 4, v{vT+2}
    v_lshlrev_b32 v{vT+3}, 7, v{vM}
    s_lshl_b32 s{t0}, s{s_wm}, 14
    s_add_u32 s{t0}, s{t0}, {XB}
    v_add3_u32 v{vXR}, v{vT+2}, v{vT+3}, s{t0}
    v_xor_b32 v{vXR+1}, 64, v{vXR}
    v_add_u32 v{vXR+2}, 0x10000, v{vXR}
    v_add_u32 v{vXR+3}, 0x10000, v{vXR+1}
    v_bfe_u32 v{vT+2}, v{vLane}, 2, 2
    v_and_b32 v{vT+1}, 1, v{vQ}
    v_lshl_or_b32 v{vT+3}, v{vT+1}, 2, v{vT+2}
    v_lshl_add_u32 v{vT}, v{vQ}, 3, v{vT+2}
    v_lshlrev_b32 v{vT+4}, 8, v{vT}
    v_and_b32 v{vT+5}, 3, v{vLane}
    v_lshlrev_b32 v{vT+6}, 3, v{vT+5}
    s_and_b32 s{t0}, s{s_tn}, 1
    s_lshl_b32 s{t1}, s{s_wn}, 2
    s_add_u32 s{t1}, s{t1}, s{t0}
    """)
    for j in range(3):
        e(f"""s_add_u32 s{t2}, s{t1}, {j}
        v_xor_b32 v{vT+7}, s{t2}, v{vT+3}
        v_lshlrev_b32 v{vT+7}, 5, v{vT+7}
        v_add3_u32 v{vWR+j}, v{vT+7}, v{vT+4}, v{vT+6}
        v_xor_b32 v{vT+7}, 16, v{vWR+j}
        v_add_u32 v{vWR+3+j}, 0x4000, v{vT+7}""")
    e(f"""s_add_u32 s{t2}, s{t0}, 3
    v_xor_b32 v{vT+7}, s{t2}, v{vT+3}
    v_lshlrev_b32 v{vT+7}, 5, v{vT+7}
    v_lshrrev_b32 v{vT+3}, 1, v{vT+5}
    v_add_u32 v{vT+7}, v{vT+7}, v{vT+4}
    v_xor_b32 v{vT+4}, s{s_wn}, v{vT+3}
    v_lshlrev_b32 v{vT+4}, 4, v{vT+4}
    v_lshlrev_b32 v{vT+3}, 14, v{vT+3}
    v_add3_u32 v{vT+7}, v{vT+7}, v{vT+4}, v{vT+3}
    v_and_b32 v{vT+3}, 8, v{vT+6}
    v_add_u32 v{vWR+6}, v{vT+7}, v{vT+3}
    """)
    e(f"""
    v_lshlrev_b32 v{vT}, 7, v{vT}
    v_lshrrev_b32 v{vT+2}, 1, v{vT+2}
    v_lshl_or_b32 v{vT+2}, v{vT+1}, 1, v{vT+2}""")
    for j in range(4):
        e(f"v_xor_b32 v{vT+3}, {j}, v{vT+2}\nv_lshlrev_b32 v{vT+3}, 5, v{vT+3}\nv_add3_u32 v{vT+3}, v{vT+3}, v{vT}, v{vT+6}\nv_accvgpr_write_b32 a{PARK+4+j}, v{vT+3}")
    e(f"""
    s_lshl_b32 s{t0}, s{s_tm}, 1
    s_add_u32 s{t0}, s{t0}, s{s_wm}
    s_mul_i32 s{t0}, s{t0}, {8*MT}
    s_lshr_b32 s{t1}, s{s_tn}, 4
    s_mul_i32 s{t1}, s{t1}, {56*1024}
    s_add_u32 s{t0}, s{t0}, s{t1}
    s_and_b32 s{t1}, s{s_tn}, 15
    s_lshl_b32 s{t1}, s{t1}, 1
    s_add_u32 s{t1}, s{t1}, s{s_wn}
    s_lshl_b32 s{t2}, s{t1}, 9
    s_add_u32 s{t2}, s{t2}, s{t0}
    s_lshl_b32 s{t1}, s{t1}, 8
    s_add_u32 s{t1}, s{t1}, s{t0}
    s_add_u32 s{t1}, s{t1}, {48*1024}
    v_lshlrev_b32 v{vT}, 4, v{vM}
    v_lshrrev_b32 v{vT+3}, 1, v{vQ}
    v_lshl_or_b32 v{vT+4}, v{vT+1}, 1, v{vT+3}
    v_mul_u32_u24 v{vT+5}, {MT}, v{vT+1}
    v_lshlrev_b32 v{vT+6}, 8, v{vT+3}
    v_add3_u32 v{vT+5}, v{vT+5}, v{vT+6}, v{vT}
    v_add_u32 v{vS2}, s{t2}, v{vT+5}
    v_mul_u32_u24 v{vT+5}, {MT}, v{vT+4}
    v_add3_u32 v{vS3}, v{vT+5}, v{vT}, s{t1}
    """)
    G = o.get("lead", 4); LB = o.get("lead_blk", 1); NB = 56 // LB
    e(f"""
    s_bfe_u32 s{t0}, s2, 0x20001
    s_lshl_b32 s{t0}, s{t0}, 2
    s_bfe_u32 s{t1}, s2, 0x20003
    s_add_u32 s{s_tm}, s{t0}, s{t1}
    s_lshr_b32 s{s_tn}, s2, 5
    s_lshl_b32 s{t1}, s{t1}, {max(lg(G) - 2, 0)}
    s_add_u32 s{t1}, s{t1}, s{s_tn}
    s_and_b32 s{s_r}, s{t1}, {G-1}
    s_and_b32 s{t3}, s2, 1
    v_lshlrev_b32 v{vT+2}, 11, v{vM}
    v_lshlrev_b32 v{vT+4}, 4, v{vT+4}
    s_lshl_b32 s{t0}, s{s_tm}, 18
    s_lshl_b32 s{t1}, s{s_w}, 16
    s_add_u32 s{t0}, s{t0}, s{t1}
    s_lshl_b32 s{t2}, s{s_tn}, 8
    s_lshl_b32 s{t1}, s{t3}, 7
    s_add_u32 s{t2}, s{t2}, s{t1}
    s_add_u32 s{t0}, s{t0}, s{t2}
    v_add3_u32 v{vT+2}, v{vT+2}, v{vT+4}, s{t0}
    v_accvgpr_write_b32 a{PARK+8}, v{vT+2}
    v_lshrrev_b32 v{vT}, 3, v{vLane}
    v_and_b32 v{vT+1}, 2, v{vT}
    v_and_b32 v{vT+2}, 7, v{vLane}
    v_xor_b32 v{vT+1}, v{vT+1}, v{vT+2}
    s_lshl_b32 s{t1}, s{s_wm}, 2
    v_xor_b32 v{vT+1}, s{t1}, v{vT+1}
    v_lshlrev_b32 v{vT+1}, 4, v{vT+1}
    v_lshlrev_b32 v{vT}, 11, v{vT}
    s_mul_i32 s{t0}, s{t3}, 1792
    s_lshl_b32 s{t1}, s{s_wm}, 3
    s_add_u32 s{t0}, s{t0}, s{t1}
    s_lshl_b32 s{t0}, s{t0}, 11
    s_add_u32 s{t0}, s{t0}, s{t2}
    v_add3_u32 v{vWk}, v{vT}, v{vT+1}, s{t0}
    v_xor_b32 v{vWg}, 0x80, v{vWk}
    s_lshl_b32 s{t0}, s{s_tm}, 2
    s_add_u32 s{t0}, s{t0}, s{s_w}
    s_mul_i32 s{t0}, s{t0}, {2*MT}
    s_mul_i32 s{t1}, s{t3}, {56*1024}
    s_add_u32 s{t0}, s{t0}, s{t1}
    v_lshl_add_u32 v{vT}, v{vLane}, 4, s{t0}
    v_accvgpr_write_b32 a{PARK+9}, v{vT}
    s_lshl_b32 s{t0}, s{s_tm}, 1
    s_add_u32 s{t0}, s{t0}, s{t3}
    s_lshl_b32 s{t0}, s{t0}, 11
    s_add_u32 s{t0}, s{t0}, {SF_OFF}
    v_bfe_u32 v{vT}, v{vLane}, 1, 4
    v_lshlrev_b32 v{vT}, 7, v{vT}
    v_and_b32 v{vT+1}, 1, v{vLane}
    v_lshlrev_b32 v{vT+1}, 2, v{vT+1}
    v_add3_u32 v{vT}, v{vT}, v{vT+1}, s{t0}
    v_accvgpr_write_b32 a{PARK+10}, v{vT}
    s_lshl_b32 s{t0}, s2, 12
    s_add_u32 s{t0}, s{t0}, s{s_m0}
    v_lshl_add_u32 v{vT+7}, v{vT+2}, 7, s{t0}
    s_lshl_b32 s{t0}, s2, 3
    s_cmp_lt_u32 s2, {NRS}
    s_cselect_b32 s{t0}, s{t0}, 256
    v_add_u32 v{vT+9}, s{t0}, v{vT+9}
    v_mov_b32 v{vT+6}, 1
    """)
    vPFA, vDbg, vOne = vT + 7, vT + 9, vT + 6
    vSW, vSH = vT + 5, vPF
    if G > 1:
        e(f"""
        v_lshrrev_b32 v{vT}, {lg(LB)}, v{vLane}
        v_subrev_u32 v{vT+1}, s{s_r}, v{vT}
        v_and_b32 v{vT+1}, {G-1}, v{vT+1}
        v_sub_u32 v{vT+2}, v{vT}, v{vT+1}
        v_add_u32 v{vT+2}, {G-1}, v{vT+2}
        v_cmp_eq_u32 vcc, 0, v{vT+1}
        v_add_u32 v{vT+3}, -1, v{vT}
        s_nop 0
        v_cndmask_b32 v{vT+3}, v{vT+3}, v{vT+2}, vcc
        v_cmp_le_u32 vcc, {NB}, v{vT+2}
        s_nop 1
        v_cndmask_b32 v{vT+3}, v{vT+3}, v{vT}, vcc
        v_cmp_gt_u32 vcc, s{s_r}, v{vT}
        v_and_b32 v{vT+1}, {LB-1}, v{vLane}
        s_nop 0
        v_cndmask_b32 v{vT+3}, v{vT+3}, v{vT}, vcc
        v_lshl_add_u32 v{vT}, v{vT+3}, {lg(LB)}, v{vT+1}
        """)
    else:
        e(f"v_mov_b32 v{vT}, v{vLane}")
    e(f"""
    v_lshlrev_b32 v{vT+1}, 10, v{vT}
    v_accvgpr_write_b32 a{PARK+11}, v{vT+1}
    s_lshl_b32 s{t1}, s{s_wn}, 6
    s_mul_i32 s{t0}, s{s_wn}, 112
    s_sub_u32 s{t0}, s{t0}, {224*48 - 48}
    v_and_b32 v{vT+1}, 15, v{vT}
    v_mul_u32_u24 v{vT+1}, 112, v{vT+1}
    v_and_b32 v{vT+2}, 0x30, v{vT}
    v_add3_u32 v{vT+1}, v{vT+1}, v{vT+2}, s{t1}
    v_cmp_gt_u32 vcc, 48, v{vT}
    v_mul_u32_u24 v{vT+2}, 224, v{vT}
    v_add_u32 v{vT+2}, s{t0}, v{vT+2}
    v_cndmask_b32 v{vT+1}, v{vT+2}, v{vT+1}, vcc
    v_lshlrev_b32 v{vSW}, 11, v{vT+1}
    """)
    s_pf = t3
    vCA, vDum = vT + 10, vT + 11
    e(f"s_getpc_b64 s[0:1]\ns_lshr_b32 s{t0}, s2, 3\ns_lshl_b32 s{t0}, s{t0}, 11\nv_lshl_add_u32 v{vCA}, v{vM}, 7, s{t0}")
    def code_touch(): return Op(f"global_load_dword v{vDum}, v{vCA}, s[0:1]", vm=True)
    e(f"s_lshl_b32 s{t0}, s2, 2\ns_add_u32 s{t0}, s{t0}, s{s_w}\ns_mul_i32 s{s_pf}, s{t0}, 7168")
    for p in seq[nfirst:npre]: emit_dma(p)
    e(f"v_add_u32 v{vW}, {128*7168}, v{vW}")
    wstep = f"v_add_u32 v{vW}, {64*7168}, v{vW}"
    def rd_x(t, mt, kk):
        xs = t % 3
        xb = vXR + kk + (2 if xs == 2 else 0); xo = xs * 32768 if xs < 2 else 0
        r = fx(t % 2, mt, kk)
        return Op(f"ds_read_b128 a[{r}:{r+3}], v{xb} offset:{xo + mt*2048}", lg=("x", t, mt, kk))
    def rd_w(t, j, kk):
        out = []
        for hi in range(2):
            r = fw(t % 2, j, kk) + 2 * hi
            out.append(Op(f"ds_read_b64_tr_b16 a[{r}:{r+1}], v{vWR+j} offset:{(t % 2)*32768 + kk*8192 + hi*1024}", lg=("w", t, j, kk)))
        return out
    started = set()
    def mf1(t, mt, j, kk):
        d = acc(mt, j)
        c = f"v[{d}:{d+3}]" if d in started else "0"
        started.add(d)
        A, B = fw(t % 2, j, kk), fx(t % 2, mt, kk)
        return Op(f"v_mfma_f32_16x16x32_bf16 v[{d}:{d+3}], a[{A}:{A+3}], a[{B}:{B+3}], {c}", nlg=[("w", t, j, kk), ("x", t, mt, kk)])
    def order_m():
        prs = []
        for mp in range(4):
            for n, j in enumerate(range(7)):
                prs += [(2*mp, j), (2*mp+1, j)] if n % 2 == 0 else [(2*mp+1, j), (2*mp, j)]
        return prs
    def order_n():
        prs = []
        for s in range(3):
            for mt in range(8):
                prs += [(mt, s), (mt, 3 + s)] if mt % 2 == 0 else [(mt, 3 + s), (mt, s)]
        prs += [(mt, 6) for mt in range(8)]
        return prs
    def step_seq(prs):
        out = []
        for n, (mt, j) in enumerate(prs):
            out += [(mt, j, 0), (mt, j, 1)] if (n % 2 == 0 or not o.get("kalt", True)) else [(mt, j, 1), (mt, j, 0)]
        return out
    def reads_for(t, sq):
        out = []; seen = set()
        for (mt, j, kk) in sq:
            if ("x", mt, kk) not in seen: seen.add(("x", mt, kk)); out.append(rd_x(t, mt, kk))
            if ("w", j, kk) not in seen: seen.add(("w", j, kk)); out += rd_w(t, j, kk)
        return out
    NS = 16
    seqs = [step_seq(order_m()) for t in range(NS)]
    seqs[15] = step_seq(order_n())
    q1 = o.get("q1", 6)
    GS = []
    for q in range(q1): GS += [(q, 0), (q, 1)]
    GS += [(q, 0) for q in range(q1, 14)] + [(q, 1) for q in range(q1, 14)]
    def slot_addr(g): return ((6 + g) % 10) * 16384
    nrl = [0]
    def dma2(g, k):
        q, hf = GS[g]
        v = vWk if hf else vWg
        sr = TW + nrl[0] % 8; nrl[0] += 1
        pre = [f"v_readlane_b32 s{sr}, v{vSW}, {4*q + k}", f"s_add_u32 m0, s{s_m0}, {slot_addr(g) + k*4096}"]
        if o.get("no_d") and g >= 10: return ([], Op("s_nop 0", vm=("d", g)))
        return (pre, Op(f"buffer_load_dwordx4 v{v}, s[{sD}:{sD+3}], s{sr} offen lds", vm=("d", g)))
    e.wait(nvm=[("x", 0), ("w", 0), "reset"]); e("s_barrier")
    e(sat("bar0"))
    r0 = reads_for(0, seqs[0])
    n_first = o.get("rd_first", 12)
    e(r0[:n_first])
    PB = o.get("pb", 56)
    posl = o.get("dma_pos") or [1, 3, 5, 14, 23, 32, 41, 50, 59, 68, 77, 84, 91, 98, 104, 110]
    left = seq[npre:]
    carry = [(2 + n * o.get("pro_every", 4), p) for n, p in enumerate(left)]
    assert not left or carry[-1][0] < PB - 1
    pf_steps = o.get("pf_steps", [1, 2, 3, 4, 5, 6, 7])
    pre2 = [(g, k) for g in range(10) for k in range(4)]
    for t in range(NS):
        fill = Fill()
        if t == 0:
            for n, r in enumerate(r0[n_first:]): fill.add(n // 2, r)
            fill.add(20, Op(f"buffer_store_dword v{vOne}, v{vDbg}, s[{sG}:{sG+3}], 0 offen sc1", vm=True))
        def put1(pos, p):
            if isinstance(p[0], list): fill.add(max(pos - 4, -1), p[0][0]); fill.add(pos - 1, p[0][1])
            else: fill.add(pos - 1, p[0])
            fill.add(pos, p[1])
            if len(p) > 2: fill.add(pos, p[2])
        for (pos, p) in carry: put1(pos, p)
        carry = []
        pb = PB if t < 15 else 0
        if t < 15:
            fill.add(pb - 1, [Op("", nvm=[("x", t + 1), ("w", t + 1)], nlg=[r0[-1].lg]), "s_barrier"])
        lst = []
        if t + 3 < NS: lst += [dma_x(t + 3, i) for i in range(NL)]
        if t + 2 < NS:
            lst += [dma_w(t + 2, i) for i in range(8)]
            lst[-1] = lst[-1] + (wstep,)
        if t + 3 < NS: lst += [dma_x(t + 3, i) for i in range(NL, 8)]
        pos = list(posl[:len(lst)])
        if t == 13:
            items = pre2[:8]; lst += [dma2(*x) for x in items]; pos += posl[8:16]
        if t == 14:
            items = pre2[8:24]; lst += [dma2(*x) for x in items]; pos += [1 + 5 * n for n in range(16)]
        if t == 15:
            fill.add(-1, "s_barrier")
            items = pre2[24:40]; lst += [dma2(*x) for x in items]; pos += [26 + 5 * n for n in range(16)]
        spf = o.get("spf")
        if spf and 1 <= t <= 56 * (128 // spf[1]) // spf[0]:
            for n in range(spf[0]):
                idx = (t - 1) * spf[0] + n
                fill.add(2 * n, f"s_buffer_load_dword s3, s[{sD}:{sD+3}], s{s_pf}" + (f" offset:{idx * spf[1]}" if False else ""))
                fill.add(2 * n, f"s_add_u32 s{s_pf}, s{s_pf}, {spf[1]}")
        if t in pf_steps:
            n = pf_steps.index(t)
            fill.add(pb + 6, f"s_mov_b32 s{t0}, {n << 20}")
            fill.add(pb + 7, Op(f"buffer_load_dword v{vDum}, v{vPFA}, s[{sD}:{sD+3}], s{t0} offen", vm=True))
        if t in o.get("ct_steps", [5, 10, 15]): fill.add(pb + 8, code_touch())
        for pp, p in zip(pos, lst):
            pp += pb
            if pp < 112: put1(pp, p)
            else: carry.append((pp - 112, p))
        if t + 1 < NS:
            rr = reads_for(t + 1, seqs[t + 1])
            span = 108 - pb
            p = pb
            for n, r in enumerate(rr): p = fill.place(max(p, pb + n * span // len(rr)), r, hi=110)
            fill.add(111, Op("", nlg=[rr[-1].lg]))
        fill.add(54, sat(f"t{t}a")); fill.add(110, sat(f"t{t}"))
        e.weave([mf1(t, *x) for x in seqs[t]], fill)
    assert not carry
    vWR2 = 1
    vH0, vH1, vPoll, vPD = 13, 0, 28, 29
    sC = t2
    e(f"""s_mov_b32 s{sC}, 0xbfb8aa3b
    s_mov_b32 s{sX}, s{sOUT}
    s_mov_b32 s{sX+1}, s{sOUT+1}
    v_and_b32 v{vT+6}, {NRS-1}, v{vLane}
    v_lshlrev_b32 v{vT+6}, 3, v{vT+6}""")
    e(Op(f"buffer_load_dword v{vT+7}, v{vT+6}, s[{sG}:{sG+3}], 0 offen sc1", vm="hs"))
    for j in range(4):
        e(f"v_accvgpr_read_b32 v{vWR2+j}, a{PARK+4+j}")
    e(f"v_accvgpr_read_b32 v{vH0}, a{PARK+9}\nv_accvgpr_read_b32 v{vPoll}, a{PARK+10}")
    for j in range(4):
        e(f"v_add_u32 v{vWR2+4+j}, 0x10000, v{vWR2+j}\nv_add_u32 v{vWR2+8+j}, 0x20000, v{vWR2+j}")
    e(f"v_min_u32 v{vT+4}, 1, v{vLane}\nv_xor_b32 v{vT+4}, 1, v{vT+4}\nv_accvgpr_write_b32 a{PARK+12}, v{vT+4}")
    e(f"v_add_u32 v{vH1}, {MT}, v{vH0}\nv_accvgpr_read_b32 v{vSH}, a{PARK+11}")
    def swiglu(g, u, dst, T):
        out = []
        for r in range(4): out.append(f"v_mul_f32 v{T+r}, s{sC}, v{g+r}")
        for r in range(4): out.append(f"v_exp_f32 v{T+r}, v{T+r}")
        for r in range(4): out.append(f"v_mul_f32 v{g+r}, v{g+r}, v{u+r}")
        for r in range(4): out.append(f"v_add_f32 v{T+r}, 1.0, v{T+r}")
        for r in range(4): out.append(f"v_rcp_f32 v{T+r}, v{T+r}")
        for r in range(4): out.append(f"v_mul_f32 v{g+r}, v{g+r}, v{T+r}")
        out.append(f"v_cvt_pk_bf16_f32 v{dst}, v{g}, v{g+1}")
        out.append(f"v_cvt_pk_bf16_f32 v{dst+1}, v{g+2}, v{g+3}")
        return out
    def hstore(r, vaddr, off, tag):
        return [f"s_mov_b32 s{t1}, {off}", "s_nop 0", f"v_permlane16_swap_b32 v{r}, v{r+2}", f"v_permlane16_swap_b32 v{r+1}, v{r+3}",
                Op(f"buffer_store_dwordx4 v[{r}:{r+3}], v{vaddr}, s[{sH}:{sH+3}], s{t1} offen sc1", vm=tag)]
    blocks = []
    for s in range(3):
        for mp in range(4):
            d = up(2 * mp, s)
            blocks.append(swiglu(gate(2*mp, s), up(2*mp, s), d, vT) + swiglu(gate(2*mp+1, s), up(2*mp+1, s), d + 2, vT) + hstore(d, vS2, 2*mp*MT + s*16384, ("hs", s)))
    for mq in range(2):
        d = mixed(4 * mq + 1); b = []
        for h in range(2):
            A, B = mixed(4*mq + 2*h), mixed(4*mq + 2*h + 1)
            b += [f"v_permlane32_swap_b32 v{A+r}, v{B+r}" for r in range(4)]
            b += swiglu(A, B, d + 2 * h, vT)
        blocks.append(b + hstore(d, vS3, 4*mq*MT, ("hs", 3)))
    def flag(s):
        return [f"v_mov_b32 v{vT+4}, {s+1}", Op(f"buffer_store_dword v{vT+4}, v{vFl}, s[{sH}:{sH+3}], 0 offen sc1", nvm=[("hs", s)], vm=("fl", s))]
    spins = []
    def poll(tag): return Op(f"buffer_load_dword v{vPD}, v{vPoll}, s[{sH}:{sH+3}], 0 offen sc1", vm=tag)
    nlab = [0]
    def check(tag, n, reg=vPD, ld=None, cmp=None, inline=None):
        lab = f"L_spin{nlab[0]}"; nlab[0] += 1
        cmp = cmp or f"v_cmp_gt_u32 vcc, {n}, v{reg}"
        if o.get("inline", True) if inline is None else inline:
            return [Op(cmp, nvm=[tag]), f"""s_cbranch_vccz {lab}_ret
            s_mov_b32 s{t3}, 0x40000
            {lab}_loop:
            {ld or poll(0).text}
            s_sub_u32 s{t3}, s{t3}, 1
            s_cmp_eq_u32 s{t3}, 0
            s_waitcnt vmcnt(0)
            s_cbranch_scc1 {lab}_ret
            {cmp}
            s_cbranch_vccnz {lab}_loop
            {lab}_ret:"""]
        spins.append((lab, ld or poll(0).text, cmp))
        return [Op(cmp, nvm=[tag]), f"s_cbranch_vccnz {lab}", f"{lab}_ret:"]
    def hreg(q, k, mi):
        s = q % 11
        r = (48 + 32 * s if s < 6 else 96 + 32 * (s - 6)) + (k * 2 + mi) * 4
        return f"{'a' if s < 6 else 'v'}[{r}:{r+3}]"
    def hload(q, k, mi):
        sr = TH + (4 * q + k) % 8
        pre = [f"v_readlane_b32 s{sr}, v{vSH}, {4*q + k}"] if mi == 0 else []
        if o.get("no_h") and q >= 2: return ([], Op("s_nop 0", vm=("h", q, k)))
        return (pre, Op(f"buffer_load_dwordx4 {hreg(q, k, mi)}, v{vH1 if mi else vH0}, s[{sH}:{sH+3}], s{sr} offen sc1", vm=("h", q, k)))
    hl = [(q, k, mi) for q in range(14) for k in range(4) for mi in range(2)]
    at = {n: [] for n in range(-1, 14)}
    assert o.get("b_hs", 5) < o.get("b_fl0", 6)
    at[o.get("b_fl0", 6)] += flag(0)
    if "b_fl2" in o: at[o["b_fl2"]] += flag(2)
    at[o.get("b_hs", 5)] += check("hs", 0, reg=vT + 7, ld=f"buffer_load_dword v{vT+7}, v{vT+6}, s[{sG}:{sG+3}], 0 offen sc1", cmp=f"v_cmp_ne_u32 vcc, 1, v{vT+7}", inline=False)
    at[o.get("b_poll", 8)].append(poll("pA"))
    TWO = o.get("two", True)
    if not TWO: at[o.get("b_fl1", 10)] += flag(1)
    bchk = o.get("b_chk", 11)
    at[bchk] += [lambda: sat("chkA0")] + check("pA", 1)
    nh0 = o.get("nh0", 8)
    for x in hl[:nh0]:
        p = hload(*x); at[bchk] += p[0] + [p[1]]
    at[bchk].append(lambda: sat("chkA1"))
    e("s_nop 1")
    e(at[-1])
    for n, b in enumerate(blocks):
        e(b); e(sat(f"b{n}")); e(at[n])
    e(sat("epi"))
    def acc2(hf, mi, j): return 32 + ((hf * 2 + mi) * 4 + j) * 4
    def fw2(u, k): return ((u % 3) * 4 + k) * 4
    NU = 4 * len(GS)
    def rd2(u):
        g, j = divmod(u, 4)
        out = []
        for k in range(4):
            ad = slot_addr(g) + k * 4096
            for hi in range(2):
                r = fw2(u, k) + 2 * hi
                out.append(Op(f"ds_read_b64_tr_b16 a[{r}:{r+1}], v{vWR2 + 4*(ad >> 16) + j} offset:{(ad & 0xffff) + hi*512}", lg=("r", u)))
        return out
    started.clear()
    def mf2(u):
        g, j = divmod(u, 4); q, hf = GS[g]
        out = []
        for mi in range(2):
            for k in (range(4) if mi == 0 else range(3, -1, -1)):
                d = acc2(hf, mi, j)
                c = f"v[{d}:{d+3}]" if d in started else "0"
                started.add(d)
                A = fw2(u, k)
                out.append(Op(f"v_mfma_f32_16x16x32_bf16 v[{d}:{d+3}], a[{A}:{A+3}], {hreg(q, k, mi)}, {c}", nvm=[("h", q, k if (u < o.get("finewait", 4)) else 3)], nlg=[("r", u)]))
        return out
    first_g = {}; last_g = {}
    for g, (q, hf) in enumerate(GS): first_g.setdefault(q, g); last_g[q] = g
    gII = max(g for g in range(len(GS)) if GS[g][1] == 0) + 1
    BF16X = o.get("xbf16", False)
    vXO, vXI, vXFo, vXFi, vO = 20, 21, 22, 23, vS2
    uB, uC = o.get("uB", 2), o.get("uC", 14)
    dchk = o.get("dchk", 7)
    work = []
    hq = hl[nh0:]; dq = [(g, k) for g in range(10, len(GS)) for k in range(4)]
    def h_earliest(q, k):
        s = min((4 * q + k + (G - 1) * LB) >> 4, 3)
        x = 0 if s == 0 else (uB + dchk + 1 if (s == 1 and not TWO) else uC + dchk + 1)
        if q >= 11: x = max(x, 4 * (last_g[q - 11] + 1))
        return x
    def h_dead(q): return 4 * first_g[q] - o.get("h_lead", 8)
    def d_earliest(g): return 4 * (g - 10) + 6
    def d_dead(g): return 4 * g - 2 - o.get("d_lead", 8) - (o.get("d_lead3", 12) if g >= gII else 0)
    items = [(h_dead(q), n, "h", (q, k, mi), h_earliest(q, k)) for n, (q, k, mi) in enumerate(hq)]
    items += [(d_dead(g), 1000 + n, "d", (g, k), d_earliest(g)) for n, (g, k) in enumerate(dq)]
    items.sort()
    rate = o.get("rate", 2)
    ust = 4 * gII + 1 + o.get("x_delay", 0)
    nxs = 4 if BF16X else 8
    ufl = ust + o.get("x_flag", 20)
    upl = ufl + o.get("x_poll", 4)
    uck = upl + o.get("x_chk", 5)
    def give_ops(k):
        if BF16X:
            d = acc2(0, 0, 0) + 8 * k
            pre = [f"v_cvt_pk_bf16_f32 v{d+r}, v{d+2*r}, v{d+2*r+1}" for r in range(4)]
        else:
            d = acc2(0, 0, 0) + 4 * k; pre = []
        if k == 4: pre.append(f"v_add_u32 v{vXO}, 0x1000, v{vXO}")
        return (pre, Op(f"buffer_store_dwordx4 v[{d}:{d+3}], v{vXO}, s[{sH}:{sH+3}], 0 offen offset:{(k % 4)*1024} sc1", vm=("gs", k)))
    def recv_ops(k):
        d = acc2(0, 0, 0) + (8 * k if BF16X else 4 * k)
        pre = [f"v_add_u32 v{vXI}, 0x1000, v{vXI}"] if k == 4 else []
        return (pre, Op(f"buffer_load_dwordx4 v[{d}:{d+3}], v{vXI}, s[{sH}:{sH+3}], 0 offen offset:{(k % 4)*1024} sc1", vm=("rc", k)))
    xflag = [Op(f"buffer_store_dword v{vT+6}, v{vXFo}, s[{sH}:{sH+3}], 0 offen sc1", nvm=[("gs", nxs - 1)], vm="xf")]
    xpoll = Op(f"buffer_load_dword v{vPD}, v{vXFi}, s[{sH}:{sH+3}], 0 offen sc1", vm="pX")
    def xcheck(): return check("pX", 0, ld=xpoll.text, cmp=f"v_cmp_gt_u32 vcc, v{vT+7}, v{vPD}")
    setup2 = [f"v_accvgpr_read_b32 v{vXFo}, a{PARK+0}", f"v_accvgpr_read_b32 v{vXFi}, a{PARK+1}", f"v_accvgpr_read_b32 v{vXO}, a{PARK+2}",
              f"v_accvgpr_read_b32 v{vXI}, a{PARK+3}", f"v_accvgpr_read_b32 v{vT+7}, a{PARK+12}", f"v_mov_b32 v{vT+6}, 1", f"v_accvgpr_read_b32 v{vO}, a{PARK+8}", ""]
    e.wait(nvm=[("d", 0)]); e("s_barrier")
    e(rd2(0)); e(rd2(1))
    gs_left = list(range(nxs)); rc_left = list(range(nxs)); xstate = 0
    ufl2, ufl3 = o.get("u_fl2", 1), o.get("u_fl3", 6)
    assert ufl3 < uC
    prev_fill = None; prev_m = None
    for u in range(NU):
        fill = Fill(); hoist = []
        g, j = divmod(u, 4)
        if j == 2 and g + 1 < len(GS):
            fill.add(-1, [Op("", nvm=[("d", g + 1)], nlg=[("r", u)]), "s_barrier"])
        if u + 2 < NU:
            for k, r in enumerate(rd2(u + 2)): fill.add(k, r)
        p = 0
        def put(pre, op):
            nonlocal p
            lo = p
            for x in pre:
                if x.startswith("v_readlane"):
                    if prev_fill is not None and len(hoist) < 3: hoist.append(x)
                    else: lo = max(lo, fill.place(0, x, hi=6) + 3)
                else:
                    p = fill.place(p, x, hi=6); lo = max(lo, p + 1)
            p = fill.place(min(lo, 7), op, hi=7)
            p = min(p + o.get("vsp", 2), 7)
        if u == ufl2 and "b_fl2" not in o and not TWO: put(flag(2)[:1], flag(2)[1])
        if u == ufl3: put(flag(3)[:1], flag(3)[1])
        if u == uB and not TWO: put([], poll("pB"))
        if u == uC: put([], poll("pC"))
        if u in o.get("ct_units", [30, 70]): put([], code_touch())
        if 20 <= u < 28: fill.place(5, setup2[u - 20], hi=7)
        n = 0
        if u >= ust and gs_left:
            for _ in range(1 if BF16X else 2):
                put(*give_ops(gs_left.pop(0))); n += 1
        if xstate == 3 and rc_left:
            for _ in range(2):
                put(*recv_ops(rc_left.pop(0))); n += 1
        rt = rate if isinstance(rate, int) else int((u + 1) * rate) - int(u * rate)
        i = 0
        blocked = set()
        while n < o.get("rate_max", 3) and i < len(items):
            dl, _, kind, x, ea = items[i]
            if n >= rt and dl > u: break
            if ea <= u and kind not in blocked:
                items.pop(i); put(*(hload(*x) if kind == "h" else dma2(*x))); n += 1
            else:
                blocked.add(kind); i += 1
        if u == uB + dchk and not TWO: fill.add(7, check("pB", 2))
        if u == uC + dchk: fill.add(7, check("pC", 4))
        if xstate == 0 and u >= ufl and not gs_left: fill.add(7, xflag); xstate = 1
        elif xstate == 1 and u >= upl: fill.add(7, xpoll); xstate = 2
        elif xstate == 2 and u >= uck: fill.add(7, xcheck()); xstate = 3
        if u == 4 * 2 * q1 - 1: fill.add(7, sat("pI"))
        if u == 4 * gII - 1: fill.add(7, sat("pII"))
        fill.add(7, sat(f"u{u}"))
        if prev_fill is not None:
            for x in hoist: prev_fill.place(3, x, hi=5)
            e.weave(prev_m, prev_fill)
        prev_fill, prev_m = fill, mf2(u)
    e.weave(prev_m, prev_fill)
    assert not items, items
    e(sat("pIII"))
    e("s_nop 7")
    for k in gs_left: p = give_ops(k); e(p[0]); e(p[1])
    e(sat("x0"))
    if xstate == 0: e(xflag); xstate = 1
    e(sat("x1"))
    if xstate == 1: e(xpoll); xstate = 2
    if xstate == 2: e(xcheck())
    e(sat("x2"))
    for k in rc_left: p = recv_ops(k); e(p[0]); e(p[1])
    if "x3" in STAT: e("s_waitcnt vmcnt(0)"); e(sat("x3"))
    for mi in range(2):
        for jp in range(2):
            d0, g0 = acc2(1, mi, 2 * jp), acc2(0, mi, 2 * jp)
            if BF16X:
                e.wait(nvm=[("rc", mi * 2 + jp)])
                for r in range(4):
                    e(f"v_lshlrev_b32 v{g0+4}, 16, v{g0+r}\nv_and_b32 v{g0+5}, 0xffff0000, v{g0+r}\nv_add_f32 v{d0+2*r}, v{d0+2*r}, v{g0+4}\nv_add_f32 v{d0+2*r+1}, v{d0+2*r+1}, v{g0+5}")
            else:
                e.wait(nvm=[("rc", mi * 4 + 2 * jp + 1)])
                for r in range(8): e(f"v_add_f32 v{d0+r}, v{d0+r}, v{g0+r}")
            r = g0
            e(f"""v_cvt_pk_bf16_f32 v{r}, v{d0}, v{d0+1}
            v_cvt_pk_bf16_f32 v{r+1}, v{d0+2}, v{d0+3}
            v_cvt_pk_bf16_f32 v{r+2}, v{d0+4}, v{d0+5}
            v_cvt_pk_bf16_f32 v{r+3}, v{d0+6}, v{d0+7}
            s_mov_b32 s{t0}, {mi*16*2048}
            s_nop 0
            v_permlane16_swap_b32 v{r}, v{r+2}
            v_permlane16_swap_b32 v{r+1}, v{r+3}""")
            e(Op(f"buffer_store_dwordx4 v[{r}:{r+3}], v{vO}, s[{sX}:{sX+3}], s{t0} offen offset:{jp*64} {o.get('out_aux', 'sc1')}", vm=True))
    e(sat("x4"))
    if ST:
        e("s_waitcnt vmcnt(0)")
        k = nst[0]; assert k <= 14, k
        nst[0] = 14; e(stamp()); e(stamp(True))
        e(f"""s_waitcnt lgkmcnt(0)
        s_cmp_lg_u32 s{s_w}, 0
        s_cbranch_scc1 L_end
        s_lshl_b32 s3, s2, 7
        s_add_u32 s3, s3, {STAMP_OFF}
        v_mov_b32 v28, s3
        s_mov_b64 exec, 1""")
        for i in range(16):
            r = 64 + 2 * (i if (i < k or i >= 14) else 14)
            e(f"v_mov_b32 v30, s{r}\nv_mov_b32 v31, s{r+1}\nglobal_store_dwordx2 v28, v[30:31], s[{sH}:{sH+1}] offset:{8*i}\ns_nop 1")
        e("s_waitcnt vmcnt(0)")
    e("L_end:\ns_endpgm")
    for lab, ld, cmp in spins:
        e(f"""{lab}:
        s_mov_b32 s{t3}, 0x40000
        {lab}_loop:
        {ld}
        s_sub_u32 s{t3}, s{t3}, 1
        s_cmp_eq_u32 s{t3}, 0
        s_waitcnt vmcnt(0)
        s_cbranch_scc1 {lab}_ret
        {cmp}
        s_cbranch_vccnz {lab}_loop
        s_branch {lab}_ret""")
    return descriptor(name, 512, 256)

def build(fn, **o):
    a = Asm()
    d = gen(a, NAME, o)
    a(".fill 8192, 4, 0xbf800000")
    open(fn, "w").write(wrap([(NAME, 256, 256, 163840)], a.text(), [d]))

if __name__ == "__main__":
    build("k3.s")
    build("k3_st.s", stamps=True)
```

```python
import sys, math
from asmlib import *
from pagefix import add_pads

MT = 112 * 1024
XCH_OFF = 0x1000000
SF_OFF = 0x1800000
XF_OFF = 0x1820000
WS_BYTES = 0x2000000
STAMP_OFF = 0x8000000
lg = lambda v: int(math.log2(v))

class Cnt:
    def __init__(self, mx, expect): self.n = 0; self.done = 0; self.tag = {}; self.mx = mx; self.cnt = {}; self.expect = expect
    def issue(self, tag):
        self.n += 1
        if tag is not True:
            self.tag[tag] = self.n; self.cnt[tag] = self.cnt.get(tag, 0) + 1
    def need(self, tags):
        k = 0
        for t in tags:
            assert t in self.tag, t
            assert self.cnt[t] == self.expect(t), (t, self.cnt[t])
            k = max(k, self.tag[t])
        if k <= self.done: return None
        c = min(self.n - k, self.mx)
        self.done = self.n - c
        return c

def exp_vm(t):
    if isinstance(t, str): return 1
    if t[0] == "hs": return 4 if t[1] < 3 else 2
    return {"x": 8, "w": 8, "d": 4, "h": 2}.get(t[0], 1)
def exp_lg(t): return {"x": 1, "w": 2, "r": 8}[t[0]]

class Op:
    def __init__(self, text, vm=None, lg=None, nvm=(), nlg=(), cost=4):
        self.text, self.vm, self.lg, self.nvm, self.nlg, self.cost = text, vm, lg, nvm, nlg, cost

class Em:
    def __init__(self, a): self.a = a; self.vm = Cnt(62, exp_vm); self.lg = Cnt(14, exp_lg)
    def wait(self, nvm=(), nlg=()):
        v = self.vm.need(nvm); l = self.lg.need(nlg)
        s = (f" vmcnt({v})" if v is not None else "") + (f" lgkmcnt({l})" if l is not None else "")
        if s: self.a("s_waitcnt" + s)
    def __call__(self, x):
        if callable(x) and not isinstance(x, Op): x = x()
        if isinstance(x, str): self.a(x); return
        if isinstance(x, (list, tuple)):
            for y in x: self(y)
            return
        self.wait(x.nvm, x.nlg)
        if x.text.endswith(" lds") and " m0," in self.a.lines[-1]: self.a("s_nop 0")
        if x.text.startswith("buffer_"):
            so = x.text.split("], ")[-1].split()[0]
            n = 0
            for l in reversed(self.a.lines[-6:]):
                if l.strip().startswith(f"v_readlane_b32 {so},"):
                    if n < 5: self.a(f"s_nop {4 - n}")
                    break
                if not l.endswith(":"): n += 1
        if x.text: self.a(x.text)
        if x.vm is not None: self.vm.issue(x.vm)
        if x.lg is not None: self.lg.issue(x.lg)
    def weave(self, mfmas, fill):
        self(fill.get(-1, []))
        for i, m in enumerate(mfmas):
            self(m); self(fill.get(i, []))
        for k in fill: assert k < len(mfmas), k

class Fill(dict):
    def add(self, p, x): self.setdefault(p, []).append(x)
    def load(self, p): return len([x for x in self.get(p, []) if x != ""])
    def slots(self, p, cost): return sum(cost(x) if not isinstance(x, list) else 3 for x in self.get(p, []) if x != "")
    def place_ds(self, p, x):
        while self.load(p) >= 2 or any(isinstance(y, Op) and y.lg is not None for y in self.get(p, [])): p += 1
        self.add(p, x); return p
    def place(self, p, x, cap=2, hi=10**9):
        while self.load(p) >= cap and p < hi: p += 1
        self.add(p, x); return p

def gen(a, name, o):
    e = Em(a)
    ST = o.get("stamps"); nst = [0]
    def stamp(real=False):
        if not ST or nst[0] >= 16: return ""
        r = 64 + 2 * nst[0]; nst[0] += 1
        return f"s_mem{'real' if real else ''}time s[{r}:{r+1}]"
    STAT = o.get("st_at", ["vis", "bar0", "t3", "t7", "t13", "t15", "ck1a", "ck1b", "epi", "pI", "pII", "pIII"])
    def sat(key):
        if key not in STAT: return ""
        if o.get("both"): return stamp(True) + "\n" + stamp(False)
        return stamp(o.get("real", False))
    kernel_begin(a, name)
    sX, sW, sH, sG, sD = 4, 8, 12, 60, 96
    sOUT = 100
    s_w, s_wm, s_wn, s_tm, s_tn, s_r, s_m0, s_mix = 16, 17, 18, 19, 20, 21, 22, 23
    sxo, sxm, swo, swm = 24, 32, 40, 48
    TW, TH = 24, 40
    t0, t1, t2, t3 = 56, 57, 58, 59
    vX, vW, vXR, vWR, vS2, vS3, vPF, vWg, vWk = 1, 2, 3, 7, 14, 15, 16, 17, 18
    vFl = 19
    vT = 20
    PARK = 240
    def gate(mt, s): return 32 + 64 * s + 4 * mt
    def up(mt, s): return 64 + 64 * s + 4 * mt
    def mixed(mt): return 224 + 4 * mt
    def acc(mt, j): return gate(mt, j) if j < 3 else (up(mt, j - 3) if j < 6 else mixed(mt))
    def fx(s, mt, kk): return s * 120 + (mt * 2 + kk) * 4
    def fw(s, j, kk): return s * 120 + 64 + (j * 2 + kk) * 4
    vLane, vQ, vM = 0, vT + 10, vT + 11
    e(stamp(True)); e(stamp())
    e(f"""
    s_cmp_ge_u32 s2, 256
    s_cbranch_scc1 L_end
    s_load_dwordx4 s[{sX}:{sX+3}], s[0:1], 0
    s_load_dwordx4 s[{sH}:{sH+3}], s[0:1], 16
    s_load_dwordx4 s[{sG}:{sG+3}], s[0:1], 40
    s_load_dwordx2 s[{sOUT}:{sOUT+1}], s[0:1], 32
    v_lshrrev_b32 v{vT}, 6, v0
    s_nop 0
    v_readfirstlane_b32 s{s_w}, v{vT}""")
    if o.get("ticket"):
        e(f"""
        s_getreg_b32 s{t0}, hwreg(HW_REG_HW_ID, 13, 2)
        s_getreg_b32 s{t1}, hwreg(HW_REG_XCC_ID, 0, 3)
        s_lshl_b32 s{t2}, s{t1}, 2
        s_add_u32 s{t2}, s{t2}, s{t0}
        s_lshl_b32 s{t2}, s{t2}, 3
        s_add_u32 s{t2}, s{t2}, 4
        s_mov_b32 s{t3}, 1
        v_mov_b32 v{vT+1}, 0
        s_cmp_lg_u32 s{s_w}, 0
        s_waitcnt lgkmcnt(0)
        s_cbranch_scc1 L_tk_wait
        s_atomic_add s{t3}, s[{sG}:{sG+1}], s{t2} glc
        s_waitcnt lgkmcnt(0)
        v_mov_b32 v{vT+2}, s{t3}
        ds_write_b32 v{vT+1}, v{vT+2}
        s_waitcnt lgkmcnt(0)
        L_tk_wait:
        s_barrier
        ds_read_b32 v{vT+2}, v{vT+1}
        s_waitcnt lgkmcnt(0)
        v_readfirstlane_b32 s{t3}, v{vT+2}
        s_barrier
        s_and_b32 s{t3}, s{t3}, 7
        s_lshl_b32 s{t0}, s{t0}, 3
        s_add_u32 s{t0}, s{t0}, s{t3}
        s_lshl_b32 s{t0}, s{t0}, 3
        s_add_u32 s2, s{t0}, s{t1}
        """)
    e(f"""
    s_getpc_b64 s[{t2}:{t3}]
    s_lshr_b32 s{t1}, s2, 3
    v_and_b32 v{vM}, 15, v0
    s_lshl_b32 s{t0}, s{t1}, 11
    v_lshl_add_u32 v{vT+1}, v{vM}, 7, s{t0}""")
    e(Op(f"global_load_dword v{vPF}, v{vT+1}, s[{t2}:{t3}]", vm=True))
    e(f"""
    v_and_b32 v{vLane}, 63, v0
    s_and_b32 s{s_tm}, s{t1}, 7
    s_lshr_b32 s{t3}, s{t1}, 3
    s_and_b32 s{t0}, s2, 7
    s_lshl_b32 s{t0}, s{t0}, 2
    s_add_u32 s{s_tn}, s{t0}, s{t3}
    s_and_b32 s{s_wm}, s{s_w}, 1
    s_lshr_b32 s{s_wn}, s{s_w}, 1
    v_lshrrev_b32 v{vQ}, 4, v{vLane}
    s_lshl_b32 s{t0}, s{s_wm}, 2
    v_or_b32 v{vT+3}, s{t0}, v{vQ}
    v_and_b32 v{vT+2}, 7, v{vLane}
    v_xor_b32 v{vT+1}, v{vT+3}, v{vT+2}
    v_lshlrev_b32 v{vT+1}, 4, v{vT+1}
    v_lshrrev_b32 v{vT+2}, 3, v{vLane}
    v_lshlrev_b32 v{vT+2}, 11, v{vT+2}
    s_lshl_b32 s{t1}, s{s_tm}, 19
    v_add3_u32 v{vX}, v{vT+1}, v{vT+2}, s{t1}
    v_lshl_or_b32 v{vT+1}, v{vT+3}, 1, s{s_wn}
    v_xor_b32 v{vT+1}, v{vT+1}, v{vM}
    v_lshlrev_b32 v{vT+1}, 4, v{vT+1}
    v_mul_u32_u24 v{vT+2}, 7168, v{vQ}
    s_mul_i32 s{t1}, s{s_tn}, 224
    s_and_b32 s{t1}, s{t1}, 0xffffffc0
    v_add3_u32 v{vW}, v{vT+1}, v{vT+2}, s{t1}
    s_lshl_b32 s{t0}, s{t3}, 13
    s_lshl_b32 s{s_m0}, s{s_w}, 10
    s_or_b32 s{sxm}, s{t0}, s{s_m0}
    s_lshl_b32 s{sxo}, s{sxm}, 4
    s_xor_b32 s{sxm+1}, s{sxm}, 0x1000
    s_lshl_b32 s{sxo+1}, s{sxm+1}, 4
    s_lshr_b32 s{t1}, s{s_tm}, 1
    s_lshl_b32 s{t1}, s{t1}, 12
    s_and_b32 s{t0}, s{s_tm}, 1
    s_lshl_b32 s{t0}, s{t0}, 10
    s_or_b32 s{t0}, s{t0}, s{t1}
    s_lshl_b32 s{t1}, s{s_wm}, 11
    s_or_b32 s{t0}, s{t0}, s{t1}
    s_lshl_b32 s{t2}, s{s_wn}, 14
    s_mul_i32 s{swo}, s{t0}, 28
    s_or_b32 s{swm}, s{t0}, s{t2}""")
    for i in range(2, 8):
        e(f"s_xor_b32 s{sxm+i}, s{sxm}, {i << 12}\ns_lshl_b32 s{sxo+i}, s{sxm+i}, 4")
    for i in range(1, 8):
        c = ((i >> 1) << 12) | ((i & 1) << 10)
        e(f"s_xor_b32 s{t1}, s{t0}, {c}\ns_mul_i32 s{swo+i}, s{t1}, 28\ns_or_b32 s{swm+i}, s{t1}, s{t2}")
    vW1 = vT + 8
    e(f"""
    v_add_u32 v{vW1}, {64*7168}, v{vW}
    s_cmp_eq_u32 s{s_wn}, 0
    s_mov_b32 s{sW+2}, {1024*7168}
    s_mov_b32 s{sW+3}, 0x20000
    s_waitcnt lgkmcnt(0)
    s_cselect_b32 s{sW}, s{sX+2}, s{sH}
    s_cselect_b32 s{sW+1}, s{sX+3}, s{sH+1}
    s_mov_b32 s{sX+2}, {2048*2048}
    s_mov_b32 s{sX+3}, 0x20000
    """)
    XB = 65536
    NL, NLW = 2, 1
    def dma_x(t, i):
        return (f"s_add_u32 m0, s{sxm+i}, {XB + (t % 3) * 32768 - t * 128}",
                Op(f"buffer_load_dwordx4 v{vX}, s[{sX}:{sX+3}], s{sxo+i} offen offset:{t*128} lds", vm=("x", t)))
    def dma_w(t, i, v=None):
        aux = o.get("w_aux", "nt") if i < o.get("w_aux_n", NLW) else ""
        return (f"s_add_u32 m0, s{swm+i}, {(t % 2) * 32768}",
                Op(f"buffer_load_dwordx4 v{v or vW}, s[{sW}:{sW+3}], s{swo+i} offen {aux} lds", vm=("w", t)))
    def emit_dma(p): e(p[0]); e(p[1])
    def mix(p, q):
        out = []; p = list(p); q = list(q)
        while p or q:
            if p: out.append(p.pop(0))
            if q: out.append(q.pop(0))
        return out
    lead0 = [dma_x(0, i) for i in range(NL)] + [dma_w(0, i) for i in range(NLW)]
    lead1 = [dma_x(1, i) for i in range(NL)] + [dma_w(1, i, vW1) for i in range(NLW)]
    lead2 = [dma_x(2, i) for i in range(NL)]
    rest0 = mix([dma_w(0, i) for i in range(NLW, 8)], [dma_x(0, i) for i in range(NL, 8)])
    rest1 = mix([dma_w(1, i, vW1) for i in range(NLW, 8)], [dma_x(1, i) for i in range(NL, 8)])
    rest2 = [dma_x(2, i) for i in range(NL, 8)]
    mode = o.get("pro", 2)
    if mode == 1: seq = lead0 + lead1 + lead2 + rest0 + rest1 + rest2; n0 = len(lead0 + lead1 + lead2 + rest0)
    elif mode == 2: seq = lead0 + lead1 + rest0 + rest1 + lead2 + rest2; n0 = len(lead0 + lead1 + rest0)
    elif mode == 3: seq = lead0 + rest0 + lead1 + lead2 + rest1 + rest2; n0 = len(lead0 + rest0)
    npre = n0 + o.get("pro_extra", 8)
    nfirst = o.get("pro_first", 8)
    for p in seq[:nfirst]: emit_dma(p)
    e(sat("iss"))
    e(f"""
    s_mov_b32 s{sD}, s{sH+2}
    s_mov_b32 s{sD+1}, s{sH+3}
    s_mov_b32 s{sD+2}, {3584*2048}
    s_mov_b32 s{sD+3}, 0x20000
    s_mov_b32 s{sH}, s{sG+2}
    s_mov_b32 s{sH+1}, s{sG+3}
    s_mov_b32 s{sH+2}, {WS_BYTES}
    s_mov_b32 s{sH+3}, 0x20000
    s_mov_b32 s{sG+2}, 256
    s_mov_b32 s{sG+3}, 0x20000
    """)
    NRS = o.get("nrs", 32); FLW = o.get("flw", 32)
    e(f"""
    s_lshl_b32 s{t0}, s{s_tm}, 1
    s_add_u32 s{t0}, s{t0}, s{s_wm}
    s_lshl_b32 s{t0}, s{t0}, 5
    s_add_u32 s{t0}, s{t0}, s{s_tn}
    s_lshl_b32 s{t0}, s{t0}, 8
    s_lshl_b32 s{t1}, s{s_wn}, 7
    s_add_u32 s{t0}, s{t0}, s{t1}
    s_add_u32 s{t0}, s{t0}, {SF_OFF}
    s_xor_b32 s{t1}, s2, 1
    s_lshl_b32 s{t1}, s{t1}, 2
    s_add_u32 s{t1}, s{t1}, s{s_w}
    s_lshl_b32 s{t2}, s{t1}, 7
    s_add_u32 s{t2}, s{t2}, {XF_OFF}
    v_lshrrev_b32 v{vT}, {lg(FLW)}, v{vLane}
    v_lshlrev_b32 v{vT}, 25, v{vT}
    v_lshl_add_u32 v{vT}, v{vLane}, 2, v{vT}
    v_add_u32 v{vFl}, s{t0}, v{vT}
    v_add_u32 v{vT+1}, s{t2}, v{vT}
    v_accvgpr_write_b32 a{PARK+0}, v{vT+1}
    v_lshlrev_b32 v{vT}, 25, v{vLane}
    s_lshl_b32 s{t0}, s2, {18 - lg(NRS)}
    s_lshl_b32 s{t3}, s{s_w}, {16 - lg(NRS)}
    s_add_u32 s{t0}, s{t0}, s{t3}
    s_cmp_lt_u32 s2, {NRS}
    s_cselect_b32 s{t0}, s{t0}, {WS_BYTES}
    s_add_u32 s{t0}, s{t0}, {SF_OFF}
    v_lshl_add_u32 v{vT+2}, v{vLane}, 4, s{t0}
    v_mov_b32 v{vT+4}, 0
    v_mov_b32 v{vT+5}, 0
    v_mov_b32 v{vT+6}, 0
    v_mov_b32 v{vT+7}, 0""")
    nrst = 64 // NRS
    assert 1 <= nrst <= 4
    for i in range(nrst):
        e(Op(f"buffer_store_dwordx4 v[{vT+4}:{vT+7}], v{vT+2}, s[{sH}:{sH+3}], 0 offen offset:{i*1024} sc1", vm="reset" if i == nrst - 1 else True))
    e(f"""
    s_xor_b32 s{t2}, s{t2}, 512
    v_add_u32 v{vT+1}, s{t2}, v{vT}
    v_accvgpr_write_b32 a{PARK+1}, v{vT+1}
    v_lshlrev_b32 v{vT+4}, 4, v{vLane}
    s_lshl_b32 s{t1}, s{t1}, 13
    s_add_u32 s{t1}, s{t1}, {XCH_OFF}
    v_add_u32 v{vT+1}, s{t1}, v{vT+4}
    v_accvgpr_write_b32 a{PARK+2}, v{vT+1}
    v_xor_b32 v{vT+1}, 0x8000, v{vT+1}
    v_accvgpr_write_b32 a{PARK+3}, v{vT+1}
    """)
    e(f"""
    v_lshrrev_b32 v{vT+2}, 1, v{vM}
    v_xor_b32 v{vT+2}, v{vT+2}, v{vQ}
    v_lshlrev_b32 v{vT+2}, 4, v{vT+2}
    v_lshlrev_b32 v{vT+3}, 7, v{vM}
    s_lshl_b32 s{t0}, s{s_wm}, 14
    s_add_u32 s{t0}, s{t0}, {XB}
    v_add3_u32 v{vXR}, v{vT+2}, v{vT+3}, s{t0}
    v_xor_b32 v{vXR+1}, 64, v{vXR}
    v_add_u32 v{vXR+2}, 0x10000, v{vXR}
    v_add_u32 v{vXR+3}, 0x10000, v{vXR+1}
    v_bfe_u32 v{vT+2}, v{vLane}, 2, 2
    v_and_b32 v{vT+1}, 1, v{vQ}
    v_lshl_or_b32 v{vT+3}, v{vT+1}, 2, v{vT+2}
    v_lshl_add_u32 v{vT}, v{vQ}, 3, v{vT+2}
    v_lshlrev_b32 v{vT+4}, 8, v{vT}
    v_and_b32 v{vT+5}, 3, v{vLane}
    v_lshlrev_b32 v{vT+6}, 3, v{vT+5}
    s_and_b32 s{t0}, s{s_tn}, 1
    s_lshl_b32 s{t1}, s{s_wn}, 2
    s_add_u32 s{t1}, s{t1}, s{t0}
    """)
    for j in range(3):
        e(f"""s_add_u32 s{t2}, s{t1}, {j}
        v_xor_b32 v{vT+7}, s{t2}, v{vT+3}
        v_lshlrev_b32 v{vT+7}, 5, v{vT+7}
        v_add3_u32 v{vWR+j}, v{vT+7}, v{vT+4}, v{vT+6}
        v_xor_b32 v{vT+7}, 16, v{vWR+j}
        v_add_u32 v{vWR+3+j}, 0x4000, v{vT+7}""")
    e(f"""s_add_u32 s{t2}, s{t0}, 3
    v_xor_b32 v{vT+7}, s{t2}, v{vT+3}
    v_lshlrev_b32 v{vT+7}, 5, v{vT+7}
    v_lshrrev_b32 v{vT+3}, 1, v{vT+5}
    v_add_u32 v{vT+7}, v{vT+7}, v{vT+4}
    v_xor_b32 v{vT+4}, s{s_wn}, v{vT+3}
    v_lshlrev_b32 v{vT+4}, 4, v{vT+4}
    v_lshlrev_b32 v{vT+3}, 14, v{vT+3}
    v_add3_u32 v{vT+7}, v{vT+7}, v{vT+4}, v{vT+3}
    v_and_b32 v{vT+3}, 8, v{vT+6}
    v_add_u32 v{vWR+6}, v{vT+7}, v{vT+3}
    """)
    e(f"""
    v_lshlrev_b32 v{vT}, 7, v{vT+2}
    v_lshl_add_u32 v{vT}, v{vQ}, 12, v{vT}
    v_lshrrev_b32 v{vT+2}, 1, v{vT+2}
    v_lshl_or_b32 v{vT+2}, v{vT+1}, 1, v{vT+2}""")
    for j in range(4):
        e(f"v_xor_b32 v{vT+3}, {j}, v{vT+2}\nv_lshlrev_b32 v{vT+3}, 5, v{vT+3}\nv_add3_u32 v{vT+3}, v{vT+3}, v{vT}, v{vT+6}\nv_accvgpr_write_b32 a{PARK+4+j}, v{vT+3}")
    e(f"""
    s_lshl_b32 s{t0}, s{s_tm}, 1
    s_add_u32 s{t0}, s{t0}, s{s_wm}
    s_mul_i32 s{t0}, s{t0}, {8*MT}
    s_lshr_b32 s{t1}, s{s_tn}, 4
    s_mul_i32 s{t1}, s{t1}, {56*1024}
    s_add_u32 s{t0}, s{t0}, s{t1}
    s_and_b32 s{t1}, s{s_tn}, 15
    s_lshl_b32 s{t1}, s{t1}, 1
    s_add_u32 s{t1}, s{t1}, s{s_wn}
    s_lshl_b32 s{t2}, s{t1}, 9
    s_add_u32 s{t2}, s{t2}, s{t0}
    s_lshl_b32 s{t1}, s{t1}, 8
    s_add_u32 s{t1}, s{t1}, s{t0}
    s_add_u32 s{t1}, s{t1}, {48*1024}
    v_lshlrev_b32 v{vT}, 4, v{vM}
    v_lshrrev_b32 v{vT+3}, 1, v{vQ}
    v_lshl_or_b32 v{vT+4}, v{vT+1}, 1, v{vT+3}
    v_mul_u32_u24 v{vT+5}, {MT}, v{vT+1}
    v_lshlrev_b32 v{vT+6}, 8, v{vT+3}
    v_add3_u32 v{vT+5}, v{vT+5}, v{vT+6}, v{vT}
    v_add_u32 v{vS2}, s{t2}, v{vT+5}
    v_mul_u32_u24 v{vT+5}, {MT}, v{vT+4}
    v_add3_u32 v{vS3}, v{vT+5}, v{vT}, s{t1}
    """)
    pf_steps = o.get("pf_steps", [1, 2, 3, 4, 5, 6, 7])
    PFL = 56 // max(len(pf_steps), 1); assert not pf_steps or PFL * len(pf_steps) == 56
    e(f"""
    s_bfe_u32 s{t0}, s2, 0x20001
    s_lshl_b32 s{t0}, s{t0}, 2
    s_bfe_u32 s{t1}, s2, 0x20003
    s_add_u32 s{s_tm}, s{t0}, s{t1}
    s_lshr_b32 s{s_tn}, s2, 5
    s_mul_i32 s{s_mix}, s{s_wn}, {48*2048}
    s_and_b32 s{t3}, s2, 1
    v_lshlrev_b32 v{vT+2}, 11, v{vM}
    v_lshlrev_b32 v{vT+4}, 4, v{vT+4}
    s_lshl_b32 s{t0}, s{s_tm}, 18
    s_lshl_b32 s{t1}, s{s_w}, 16
    s_add_u32 s{t0}, s{t0}, s{t1}
    s_lshl_b32 s{t2}, s{s_tn}, 8
    s_lshl_b32 s{t1}, s{t3}, 7
    s_add_u32 s{t2}, s{t2}, s{t1}
    s_add_u32 s{t0}, s{t0}, s{t2}
    v_add3_u32 v{vT+2}, v{vT+2}, v{vT+4}, s{t0}
    v_accvgpr_write_b32 a{PARK+8}, v{vT+2}
    v_lshrrev_b32 v{vT}, 3, v{vLane}
    v_and_b32 v{vT+1}, 2, v{vT}
    v_and_b32 v{vT+2}, 7, v{vLane}
    v_xor_b32 v{vT+1}, v{vT+1}, v{vT+2}
    s_lshl_b32 s{t1}, s{s_wm}, 2
    v_xor_b32 v{vT+1}, s{t1}, v{vT+1}
    v_lshlrev_b32 v{vT+1}, 4, v{vT+1}
    v_lshlrev_b32 v{vT}, 11, v{vT}
    s_mul_i32 s{t0}, s{t3}, 1792
    s_lshl_b32 s{t1}, s{s_wn}, 6
    s_add_u32 s{t0}, s{t0}, s{t1}
    s_lshl_b32 s{t1}, s{s_wm}, 3
    s_add_u32 s{t0}, s{t0}, s{t1}
    s_lshl_b32 s{t0}, s{t0}, 11
    s_add_u32 s{t0}, s{t0}, s{t2}
    v_add3_u32 v{vWk}, v{vT}, v{vT+1}, s{t0}
    v_xor_b32 v{vWg}, 0x80, v{vWk}
    s_lshl_b32 s{t0}, s{s_tm}, 2
    s_add_u32 s{t0}, s{t0}, s{s_w}
    s_mul_i32 s{t0}, s{t0}, {2*MT}
    s_mul_i32 s{t1}, s{t3}, {56*1024}
    s_add_u32 s{t0}, s{t0}, s{t1}
    v_lshl_add_u32 v{vT}, v{vLane}, 4, s{t0}
    v_accvgpr_write_b32 a{PARK+9}, v{vT}
    s_lshl_b32 s{t0}, s{s_tm}, 1
    s_add_u32 s{t0}, s{t0}, s{t3}
    s_lshl_b32 s{t0}, s{t0}, 12
    s_add_u32 s{t0}, s{t0}, {SF_OFF}
    v_and_b32 v{vT}, 31, v{vLane}
    v_lshl_add_u32 v{vT}, v{vT}, 7, s{t0}
    v_accvgpr_write_b32 a{PARK+10}, v{vT}
    s_lshl_b32 s{t0}, s2, 2
    s_add_u32 s{t0}, s{t0}, s{s_w}
    s_mul_i32 s{t0}, s{t0}, {PFL * 128}
    v_min_u32 v{vT+2}, {PFL - 1}, v{vLane}
    v_lshl_add_u32 v{vT+7}, v{vT+2}, 7, s{t0}
    v_mov_b32 v{vT+9}, 0
    v_min_u32 v{vT+4}, 1, v{vLane}
    v_xor_b32 v{vT+4}, 1, v{vT+4}
    v_accvgpr_write_b32 a{PARK+12}, v{vT+4}
    """)
    vPFA, vDbg, vOne = vT + 7, vT + 9, vT + 6
    s_pf = t3
    vCA, vDum = vT + 10, vT + 11
    e(f"s_getpc_b64 s[0:1]\ns_lshr_b32 s{t0}, s2, 3\ns_lshl_b32 s{t0}, s{t0}, 11\nv_lshl_add_u32 v{vCA}, v{vM}, 7, s{t0}")
    def code_touch(): return Op(f"global_load_dword v{vDum}, v{vCA}, s[0:1]", vm=True)
    e(f"s_lshl_b32 s{t0}, s2, 2\ns_add_u32 s{t0}, s{t0}, s{s_w}\ns_mul_i32 s{s_pf}, s{t0}, 7168")
    e(f"s_lshl_b32 s{s_r}, s{s_w}, 12")
    ROT = o.get("rot", True)
    e(f"""s_add_u32 s{s_tm}, s{s_tm}, s{s_tn}
    s_and_b32 s{s_tm}, s{s_tm}, {3 if ROT else 0}
    s_sub_u32 s{sD}, s{sD}, 4096
    s_subb_u32 s{sD+1}, s{sD+1}, 0
    s_mov_b32 s{sD+2}, {3584*2048 + 4096}
    v_add_u32 v{vPFA}, 4096, v{vPFA}""")
    if o.get("visit", True):
        e(f"""s_mov_b64 exec, 0
        s_cmp_eq_u32 s{s_w}, 0
        s_cbranch_scc1 L_pad0
        s_cmp_eq_u32 s{s_w}, 1
        s_cbranch_scc1 L_pad1
        s_cmp_eq_u32 s{s_w}, 2
        s_cbranch_scc1 L_pad2
        s_branch L_pad3
        L_pad_ret:
        s_mov_b64 exec, -1""")
    e(sat("vis"))
    for p in seq[nfirst:npre]: emit_dma(p)
    e(f"v_add_u32 v{vW}, {128*7168}, v{vW}")
    wstep = f"v_add_u32 v{vW}, {64*7168}, v{vW}"
    def rd_x(t, mt, kk):
        xs = t % 3
        xb = vXR + kk + (2 if xs == 2 else 0); xo = xs * 32768 if xs < 2 else 0
        r = fx(t % 2, mt, kk)
        return Op(f"ds_read_b128 a[{r}:{r+3}], v{xb} offset:{xo + mt*2048}", lg=("x", t, mt, kk))
    def rd_w(t, j, kk):
        out = []
        for hi in range(2):
            r = fw(t % 2, j, kk) + 2 * hi
            out.append(Op(f"ds_read_b64_tr_b16 a[{r}:{r+1}], v{vWR+j} offset:{(t % 2)*32768 + kk*8192 + hi*1024}", lg=("w", t, j, kk)))
        return out
    started = set()
    def mf1(t, mt, j, kk):
        d = acc(mt, j)
        c = f"v[{d}:{d+3}]" if d in started else "0"
        started.add(d)
        A, B = fw(t % 2, j, kk), fx(t % 2, mt, kk)
        return Op(f"v_mfma_f32_16x16x32_bf16 v[{d}:{d+3}], a[{A}:{A+3}], a[{B}:{B+3}], {c}", nlg=[("w", t, j, kk), ("x", t, mt, kk)])
    def order_m():
        prs = []
        for mp in range(4):
            for n, j in enumerate(range(7)):
                prs += [(2*mp, j), (2*mp+1, j)] if n % 2 == 0 else [(2*mp+1, j), (2*mp, j)]
        return prs
    def order_n():
        prs = []
        for s in range(3):
            for mt in range(8):
                prs += [(mt, s), (mt, 3 + s)] if mt % 2 == 0 else [(mt, 3 + s), (mt, s)]
        prs += [(mt, 6) for mt in range(8)]
        return prs
    def step_seq(prs):
        out = []
        for n, (mt, j) in enumerate(prs):
            out += [(mt, j, 0), (mt, j, 1)] if (n % 2 == 0 or not o.get("kalt", True)) else [(mt, j, 1), (mt, j, 0)]
        return out
    def reads_for(t, sq):
        out = []; seen = set()
        for (mt, j, kk) in sq:
            if ("x", mt, kk) not in seen: seen.add(("x", mt, kk)); out.append(rd_x(t, mt, kk))
            if ("w", j, kk) not in seen: seen.add(("w", j, kk)); out += rd_w(t, j, kk)
        return out
    NS = 16
    seqs = [step_seq(order_m()) for t in range(NS)]
    seqs[15] = step_seq(order_n())
    q1 = o.get("q1", 6)
    GS = []
    for q in range(q1): GS += [(q, 0), (q, 1)]
    GS += [(q, 0) for q in range(q1, 14)] + [(q, 1) for q in range(q1, 14)]
    def slot_addr(g): return ((6 + g) % 10) * 16384
    SO = o.get("stage_order", [3, 0, 1, 2])
    KG = []
    for st_ in SO: KG += [(st_, i) for i in range(2 if st_ == 3 else 4)]
    wstage = {}; nlit = [0]; cur_m0 = [None]
    DL = o.get("dlead", 8)
    vWgL, vWkL = vPF, vCA
    def dma2(g, k):
        q, hf = GS[g]; st_, gi = KG[q]
        v = (vWk if hf else vWg) if (k > 0 or not DL) else (vWkL if hf else vWgL)
        pre = []
        old = wstage.get(v, 0)
        if st_ != old:
            pre.append(f"v_add_u32 v{v}, {(st_ - old) * 16 * 2048}, v{v}")
            if st_ == 3: pre.append(f"v_add_u32 v{v}, s{s_mix}, v{v}")
            if old == 3: pre.append(f"v_subrev_u32 v{v}, s{s_mix}, v{v}")
            wstage[v] = st_
        if cur_m0[0] != g: pre.append(f"s_add_u32 m0, s{s_r}, {slot_addr(g)}"); cur_m0[0] = g
        if st_ < 3: sr = f"s{TW + 4*gi + k}"
        else:
            sr = f"s{TH + 8 + nlit[0] % 4}"; nlit[0] += 1
            pre.append(f"s_lshl1_add_u32 {sr}, s{TW + 4*gi + k}, {-(4 - k) * 1024}")
        if o.get("d2_skip") and g < 10: return (pre, Op("s_nop 0", vm=("d", g)))
        if o.get("no_d") and g >= 10: return ([], Op("s_nop 0", vm=("d", g)))
        return (pre, Op(f"buffer_load_dwordx4 v{v}, s[{sD}:{sD+3}], {sr} offen offset:{k*1024} lds", vm=("d", g)))
    tw_ops = [f"v_mov_b32 v{vWgL}, v{vWg}", f"v_mov_b32 v{vWkL}, v{vWk}"]
    for i in range(4):
        tw_ops += [f"s_add_u32 s{TW+i}, s{s_tm}, {i}", f"s_and_b32 s{TW+i}, s{TW+i}, 3", f"s_mul_i32 s{TW+i}, s{TW+i}, {112*2048}", f"s_add_u32 s{TW+i}, s{TW+i}, {(4 - i) * 1024}"]
    for i in range(4, 16): tw_ops.append(f"s_add_u32 s{TW+i}, s{TW + (i & 3)}, {(i >> 2) * 4 * 112 * 2048}")
    th_ops = []
    for i in range(4): th_ops += [f"s_add_u32 s{TH+4+i}, s{s_tm}, {i}", f"s_and_b32 s{TH+4+i}, s{TH+4+i}, 3", f"s_lshl_b32 s{TH+4+i}, s{TH+4+i}, 10"]
    def lead_order(gs):
        if not DL: return [(g, k) for g in gs for k in range(4)]
        return [(g, 0) for g in gs] + [(g, k) for g in gs for k in range(1, 4)]
    vPoll, vPD = 28, 29
    THS = o.get("t_hs", 10)
    hs_ld = f"buffer_load_dword v{vOne}, v{vDbg}, s[{sG}:{sG+3}], 0 offen sc1"
    spins = []
    def poll(tag): return Op(f"buffer_load_dword v{vPD}, v{vPoll}, s[{sH}:{sH+3}], 0 offen sc1", vm=tag)
    nlab = [0]
    def check(tag, n, reg=vPD, ld=None, cmp=None, inline=None):
        lab = f"L_spin{nlab[0]}"; nlab[0] += 1
        cmp = cmp or f"v_cmp_gt_u32 vcc, {n}, v{reg}"
        if o.get("inline", True) if inline is None else inline:
            return [Op(cmp, nvm=[tag]), f"""s_cbranch_vccz {lab}_ret
            s_mov_b32 s3, 0x40000
            {lab}_loop:
            {ld or poll(0).text}
            s_sub_u32 s3, s3, 1
            s_cmp_eq_u32 s3, 0
            s_waitcnt vmcnt(0)
            s_cbranch_scc1 {lab}_ret
            {cmp}
            s_cbranch_vccnz {lab}_loop
            {lab}_ret:"""]
        spins.append((lab, ld or poll(0).text, cmp))
        return [Op(cmp, nvm=[tag]), f"s_cbranch_vccnz {lab}", f"{lab}_ret:"]
    e("s_branch L_main\n.p2align 12\nL_main:")
    e.wait(nvm=[("x", 0), ("w", 0), "reset"]); e("s_barrier")
    e(sat("bar0"))
    PB = o.get("pb", 56)
    P0 = 112 * 14
    MS = []
    for t in range(14): MS += [(t,) + x for x in step_seq(order_m())]
    def stage_tiles(st_):
        if st_ == 3: return [(mt, 6) for mt in range(8)]
        out = []
        for mt in range(8): out += [(mt, st_), (mt, 3 + st_)] if mt % 2 == 0 else [(mt, 3 + st_), (mt, st_)]
        return out
    nsplit = o.get("j_split", 2)
    for st_ in SO[:nsplit]: MS += [(14,) + x for x in step_seq(stage_tiles(st_))]
    for st_ in SO[:nsplit]: MS += [(15,) + x for x in step_seq(stage_tiles(st_))]
    for st_ in SO[nsplit:]:
        for n, (mt, j) in enumerate(stage_tiles(st_)):
            c = [(14, mt, j, 0), (14, mt, j, 1), (15, mt, j, 1), (15, mt, j, 0)]
            MS += c if n % 2 == 0 else c[::-1]
    assert len(MS) == 1792 and len(set(MS)) == 1792
    last_pos = {}
    for p, (t, mt, j, kk) in enumerate(MS): last_pos[(mt, j)] = p
    def rds(t): return reads_for(t, [x[1:] for x in MS if x[0] == t])
    fill = Fill()
    r0 = rds(0)
    n_first = o.get("rd_first", 12)
    e(r0[:n_first])
    for n, r in enumerate(r0[n_first:]): fill.add(n // 2 if n < 20 else n - 10, r)
    def put1(pos, p):
        pre = p[0] if isinstance(p[0], list) else [p[0]]
        for n, x in enumerate(pre): fill.add(pos - len(pre) + n, x)
        fill.add(pos, p[1])
        if len(p) > 2: fill.add(pos + 1, p[2])
    posl = o.get("dma_pos") or [1, 3, 5, 14, 23, 32, 41, 50, 59, 68, 77, 84, 91, 98, 104, 110]
    left = seq[npre:]
    for n, p in enumerate(left):
        pos = 2 + n * o.get("pro_every", 4); assert pos < PB - 1
        put1(pos, p)
    NPRE = o.get("npre2", 10)
    pre2 = lead_order(range(2)) + lead_order(range(2, min(6, NPRE))) + lead_order(range(6, NPRE))
    JB1 = P0 + o.get("jb1", 20); JB2 = JB1 + o.get("jb2", 48)
    prev_last = r0[-1]
    n_early = o.get("rd_early", 32)
    for t in range(14):
        b = 112 * t + PB
        fill.add(b - 1, Op("", nvm=[("x", t + 1), ("w", t + 1)], nlg=[prev_last.lg])); fill.add(b - 1, "s_barrier")
        lst = []
        if t + 3 < NS: lst += [dma_x(t + 3, i) for i in range(NL)]
        lst += [dma_w(t + 2, i) for i in range(8)]
        lst[-1] = lst[-1] + (wstep,)
        if t + 3 < NS: lst += [dma_x(t + 3, i) for i in range(NL, 8)]
        pos = posl if t < 13 else [1 + o.get("w15_every", 5) * n for n in range(8)]
        for pp, p in zip(pos, lst): put1(b + pp, p)
        if t == 13:
            p = b
            for n, x in enumerate(tw_ops): p = fill.place(p, x)
            assert p < b + pos[-1] + o.get("d2_gap", 8) - 4
            d0 = b + pos[-1] + o.get("d2_gap", 8)
            for n, x in enumerate(pre2[:8]): put1(d0 + 4 * n, dma2(*x))
            assert d0 + 28 < JB1 + 4
        if t == 1:
            fill.add(112, f"s_lshl_b32 s{t0}, s{s_w}, 8"); fill.add(113, f"s_add_u32 s{t0}, s{t0}, s2")
            fill.add(113, f"s_cmp_lt_u32 s{t0}, {NRS}\ns_cbranch_scc1 L_hs_add\nL_hs_ret:")
        if t == THS: fill.add(b + 9, Op(hs_ld, vm="hs"))
        if t == THS + 1: fill.add(b - 10, check("hs", 0, ld=hs_ld, cmp=f"v_cmp_ne_u32 vcc, {NRS}, v{vOne}", inline=False))
        if t in pf_steps:
            n = pf_steps.index(t)
            pp_ = o.get("pf_pos", 7)
            fill.add(b + pp_ - 1, f"s_mov_b32 s{t0}, {n * PFL * 128 * 1024}")
            fill.add(b + pp_, Op(f"buffer_load_dword v{vDum}, v{vPFA}, s[{sD}:{sD+3}], s{t0} offen", vm=True))
        if t in o.get("ct_steps", []): fill.add(b + 8, code_touch())
        fill.add(112 * t + 54, sat(f"t{t}a")); fill.add(112 * t + 110, sat(f"t{t}"))
        rr = rds(t + 1)
        ne = n_early if t < 13 else o.get("rd_early13", 30)
        span = 112 * t + 108 - b
        p = b - 1
        for n, r in enumerate(rr[:ne]): p = fill.place_ds(max(p + 1, b + n * span // ne), r)
        assert p < 112 * (t + 1)
        p = 112 * (t + 1) - 1
        for n, r in enumerate(rr[ne:]): p = fill.place_ds(p + (2 if t < 13 else 1), r)
        assert p < (112 * (t + 1) + PB - 3 if t < 13 else JB1 - 1), p
        prev_last = rr[-1]
    fill.add(JB1 - 1, Op("", nvm=[("x", 15), ("w", 15)], nlg=[prev_last.lg])); fill.add(JB1 - 1, "s_barrier")
    d2e = o.get("d2_every", 4)
    d1 = max(JB1 + 4 + o.get("d2_off", 4), P0 + o.get("d2_late1", 0))
    for n, x in enumerate(pre2[8:min(24, 4 * NPRE)]): put1(d1 + d2e * n, dma2(*x))
    rr = rds(15); p = JB1 - 1
    for r in rr: p = fill.place_ds(p + 1, r)
    JB2 = max(JB2, p + 4)
    fill.add(JB2 - 1, Op("", nlg=[rr[-1].lg])); fill.add(JB2 - 1, "s_barrier")
    d0 = max(JB2 + 3, d1 + d2e * 16, P0 + o.get("d2_late", 0))
    d2e = o.get("d2_every2", d2e)
    for n, x in enumerate(pre2[24:4 * NPRE]): put1(d0 + d2e * n, dma2(*x))
    fill.add(1790, sat("t15"))
    vWR2 = 1
    vH0, vH1 = 13, 0
    sC, sOne = 56, 58
    u0, u1 = TH + 12, TH + 13
    fill.place(P0 + 1, f"s_mov_b32 s{sC}, 0xbfb8aa3b"); fill.place(P0 + 2, f"s_mov_b32 s{sC+1}, 0xbfb8aa3b")
    fill.place(P0 + 3, f"s_mov_b32 s{sOne}, 1.0"); fill.place(P0 + 4, f"s_mov_b32 s{sOne+1}, 1.0")
    fill.place(P0 + 5, f"s_mov_b32 s{sX}, s{sOUT}"); fill.place(P0 + 6, f"s_mov_b32 s{sX+1}, s{sOUT+1}")
    p = fill.place(P0 + 7, f"v_accvgpr_read_b32 v{vPoll}, a{PARK+10}")
    for x in th_ops: p = fill.place(p, x)
    setup1 = [f"v_accvgpr_read_b32 v{vWR2+j}, a{PARK+4+j}" for j in range(4)] + [f"v_accvgpr_read_b32 v{vH0}, a{PARK+9}"]
    for j in range(4): setup1 += [f"v_add_u32 v{vWR2+4+j}, 0x10000, v{vWR2+j}", f"v_add_u32 v{vWR2+8+j}, 0x20000, v{vWR2+j}"]
    setup1 += [f"v_add_u32 v{vH1}, {MT}, v{vH0}"]
    def quad(g, u, dst):
        out = [f"v_mul_f32 v{u+r}, v{g+r}, v{u+r}" for r in range(4)]
        out += [f"v_mul_f32 v{g+r}, s{sC}, v{g+r}" for r in range(4)]
        out += [f"v_exp_f32 v{g+r}, v{g+r}" for r in range(4)]
        out += [f"v_add_f32 v{g+r}, 1.0, v{g+r}" for r in range(4)]
        out += [f"v_rcp_f32 v{g+r}, v{g+r}" for r in range(4)]
        out += [f"v_mul_f32 v{u+r}, v{g+r}, v{u+r}" for r in range(4)]
        out += [f"v_cvt_pk_bf16_f32 v{dst}, v{u}, v{u+1}", f"v_cvt_pk_bf16_f32 v{dst+1}, v{u+2}, v{u+3}"]
        return out
    def pk(op, d, x, y): return f"v_pk_{op}_f32 v[{d}:{d+1}], v[{x}:{x+1}], {y}"
    def quad_pk(g, u, dst):
        V = lambda r: f"v[{r}:{r+1}]"
        C, ONE = f"s[{sC}:{sC+1}]", f"s[{sOne}:{sOne+1}]"
        return [pk("mul", u, g, V(u)), pk("mul", g, g, C), pk("mul", u + 2, g + 2, V(u + 2)), f"v_exp_f32 v{g}, v{g}", pk("mul", g + 2, g + 2, C),
                f"v_exp_f32 v{g+1}, v{g+1}", f"v_exp_f32 v{g+2}, v{g+2}", pk("add", g, g, ONE), f"v_exp_f32 v{g+3}, v{g+3}", f"v_rcp_f32 v{g}, v{g}",
                pk("add", g + 2, g + 2, ONE), f"v_rcp_f32 v{g+1}, v{g+1}", f"v_rcp_f32 v{g+2}, v{g+2}", pk("mul", u, g, V(u)), f"v_rcp_f32 v{g+3}, v{g+3}",
                f"v_cvt_pk_bf16_f32 v{dst}, v{u}, v{u+1}", pk("mul", u + 2, g + 2, V(u + 2)), f"v_cvt_pk_bf16_f32 v{dst+1}, v{u+2}, v{u+3}"]
    def hstore(r, vaddr, off, tag):
        return [f"s_mov_b32 s{u0}, {off}", "s_nop 0", f"v_permlane16_swap_b32 v{r}, v{r+2}", f"v_permlane16_swap_b32 v{r+1}, v{r+3}",
                Op(f"buffer_store_dwordx4 v[{r}:{r+3}], v{vaddr}, s[{sH}:{sH+3}], s{u0} offen sc1", vm=tag)]
    blocks = []
    for si, st_ in enumerate(SO):
        if st_ < 3:
            for mp in range(4):
                A, B = 2 * mp, 2 * mp + 1; d = gate(A, st_)
                rdy = max(last_pos[(m, j)] for m in (A, B) for j in (st_, st_ + 3))
                blocks.append((rdy, [("q", gate(A, st_), up(A, st_), d), ("q", gate(B, st_), up(B, st_), d + 2)] + hstore(d, vS2, A*MT + st_*16384, ("hs", st_))))
        else:
            for mq in range(2):
                d = mixed(4 * mq); b = []
                for h in range(2):
                    A, B = mixed(4*mq + 2*h), mixed(4*mq + 2*h + 1)
                    b += [f"v_permlane32_swap_b32 v{A+r}, v{B+r}" for r in range(4)] + [("q", A, B, d + 2 * h)]
                rdy = max(last_pos[(m, 6)] for m in range(4 * mq, 4 * mq + 4))
                blocks.append((rdy, b + hstore(d, vS3, 4*mq*MT, ("hs", 3))))
    def flag(n):
        return [f"v_mov_b32 v{vT+4}, {n}", Op(f"buffer_store_dword v{vT+4}, v{vFl}, s[{sH}:{sH+3}], 0 offen sc1", nvm=[("hs", x) for x in SO[:n]], vm=("fl", n))]
    EARLY = o.get("early_h", True)
    if EARLY:
        assert SO == [0, 1, 2, 3]
        HS = [("v", 32), ("v", 64)] + [("a", 48 + 32 * i) for i in range(6)] + [("v", 160), ("v", 192), ("v", 224)]; ACC2 = 96
    else:
        HS = [("a", 48 + 32 * i) for i in range(6)] + [("v", 96 + 32 * i) for i in range(5)]; ACC2 = 32
    def hreg(q, k, mi):
        kind, r = HS[q % 11]
        r += (k * 2 + mi) * 4
        return f"{kind}[{r}:{r+3}]"
    def hload(q, k, mi):
        st_, gi = KG[q]
        if ROT:
            sr = TH + k; off = 0
            pre = [f"s_add_u32 s{sr}, s{TH+4+k}, {(16*st_ + 4*gi) * 1024}"] if mi == 0 else []
        else:
            sr = TH + q % 4; off = k * 1024
            pre = [f"s_mov_b32 s{sr}, {(16*st_ + 4*gi) * 1024}"] if (k == 0 and mi == 0) else []
        if o.get("no_h") and q >= 2: return ([], Op("s_nop 0", vm=("h", q, k)))
        return (pre, Op(f"buffer_load_dwordx4 {hreg(q, k, mi)}, v{vH1 if mi else vH0}, s[{sH}:{sH+3}], s{sr} offen offset:{off} sc1", vm=("h", q, k)))
    hl = [(q, k, mi) for q in range(14) for k in range(4) for mi in range(2)]
    def acc2(hf, mi, j): return ACC2 + ((hf * 2 + mi) * 4 + j) * 4
    def fw2(u, k): return ((u % 3) * 4 + k) * 4
    NU = 4 * len(GS)
    def rd2(u):
        g, j = divmod(u, 4)
        out = []
        for k in range(4):
            ad = slot_addr(g) + k * 1024
            for hi in range(2):
                r = fw2(u, k) + 2 * hi
                out.append(Op(f"ds_read_b64_tr_b16 a[{r}:{r+1}], v{vWR2 + 4*(ad >> 16) + j} offset:{(ad & 0xffff) + hi*512}", lg=("r", u)))
        return out
    EV = o.get("events") or {"fl1": ("b", 3), "pl1": ("b", 6), "ck1": ("b", 9), "fl2": ("b", 9), "pl2": ("b", 12), "ck2": ("u", 0), "fl4": ("u", 4), "pl4": ("u", 14), "ck4": ("u", 21)}
    at = {n: [] for n in range(14)}; atu = {}
    NB1 = 14 - o.get("defer", 0)
    nh0 = o.get("nh0", 16)
    stage_ok = {}
    STOP = "stop"; HGO = "hgo"; hfirst = []
    for key in sorted(EV, key=lambda z: ("fl", "pl", "ck").index(z[:2])):
        kind, n = key[:2], int(key[2:]); where, pos = EV[key]
        ops = (flag(n) + ([lambda n=n: sat(f"fl{n}")] if where == "b" else [])) if kind == "fl" else ([poll(f"p{n}")] if kind == "pl" else [lambda n=n: sat(f"ck{n}a")] + check(f"p{n}", n) + [lambda n=n: sat(f"ck{n}b")])
        if kind == "ck": stage_ok[n] = 0 if where == "b" else pos + 1
        if where == "b":
            if kind == "ck" and not EARLY: at[pos].append(STOP)
            at[pos] += ops
            if kind == "ck" and n == min(int(k_[2:]) for k_ in EV if k_[:2] == "ck"):
                at[pos].append(HGO)
                for i_, x in enumerate(hl[:nh0]):
                    assert SO.index(KG[x[0]][0]) < n and (not EARLY or x[0] < 2)
                    p = hload(*x); hfirst.append(p[0] + [p[1]])
        else: atu.setdefault(pos, []).append((kind, ops))
    at[min(o.get("b_rd", 12), NB1 - 1)] += [STOP, Op("", nvm=[("d", 0)]), "s_barrier"] + rd2(0) + rd2(1)
    stream = []; deferred = []
    for n, (rdy, items) in enumerate(blocks):
        if n < NB1: stream += [(rdy + 8, x) for x in items] + [(0, lambda n=n: sat(f"b{n}"))] + [(0, x) for x in at[n]]
        else:
            assert not at[n]
            for x in items: deferred += quad(*x[1:]) if isinstance(x, tuple) else [x]
    i0 = [i_ for i_, (r_, y) in enumerate(stream) if y is HGO][0]
    tail = stream[i0 + 1:]; stream = stream[:i0]
    nq = o.get("nh_q", 2)
    def take(n_):
        out = []
        for _ in range(n_):
            if hfirst: out += [(0, y) for y in hfirst.pop(0)]
        return out
    stream += take(o.get("nh_first", nq))
    for r_, y in tail:
        if y is STOP and o.get("nh_flush", True): stream += take(99)
        stream.append((r_, y))
        if isinstance(y, tuple): stream += take(nq)
    stream += take(99)
    p = JB2
    for x in setup1: p = fill.place(p, x)
    SETUP_END = p
    def cost(x):
        if callable(x) and not isinstance(x, Op): return 0
        t_ = x.text if isinstance(x, Op) else x
        return 2 if t_.startswith(("v_exp", "v_rcp")) else (2 if (isinstance(x, Op) and x.nvm) else 1)
    cap = o.get("j_cap", 2); thresh = o.get("burst", 99); nq_done = [0]
    p = P0
    while stream and o.get("shadow", True):
        rdy, x = stream[0]
        if x is STOP: break
        p = max(p, rdy)
        if p >= 1791: break
        if isinstance(x, tuple):
            nready = len([1 for r_, y in stream if isinstance(y, tuple) and r_ <= p])
            nq_done[0] += 1
            if nready >= thresh or nq_done[0] <= o.get("burst_n0", 0):
                fill.add(p, quad_pk(*x[1:])); stream.pop(0); p += o.get("burst_gap", 0); continue
            if p > 1791 - o.get("j_margin", 10): break
            stream = [(rdy, y) for y in quad(*x[1:])] + stream[1:]; continue
        if isinstance(x, Op) and isinstance(x.vm, tuple) and x.vm[0] == "h": p = max(p, SETUP_END + 1)
        fast = nq_done[0] <= o.get("burst_n0", 0) or (o.get("fast_st") and not (isinstance(x, str) and x.startswith(("v_mul", "v_exp", "v_add", "v_rcp", "v_cvt"))))
        while p < 1791 and not fast and fill.slots(p, cost) + cost(x) > cap: p += 1
        if p >= 1791: break
        fill.add(p, x); stream.pop(0)
    e.weave([mf1(*x) for x in MS], fill)
    e("s_nop 6")
    for rdy, x in stream:
        if x is STOP: continue
        e((quad_pk if o.get("pk", True) else quad)(*x[1:]) if isinstance(x, tuple) else x)
    e(sat("epi"))
    started.clear()
    def mf2(u):
        g, j = divmod(u, 4); q, hf = GS[g]
        out = []
        for mi in range(2):
            for k in (range(4) if mi == 0 else range(3, -1, -1)):
                d = acc2(hf, mi, j)
                c = f"v[{d}:{d+3}]" if d in started else "0"
                started.add(d)
                A = fw2(u, k)
                out.append(Op(f"v_mfma_f32_16x16x32_bf16 v[{d}:{d+3}], a[{A}:{A+3}], {hreg(q, k, mi)}, {c}", nvm=[("h", q, k if (u < o.get("finewait", 4)) else 3)], nlg=[("r", u)]))
        return out
    first_g = {}; last_g = {}
    for g, (q, hf) in enumerate(GS): first_g.setdefault(q, g); last_g[q] = g
    gII = max(g for g in range(len(GS)) if GS[g][1] == 0) + 1
    BF16X = o.get("xbf16", True)
    vXO, vXI, vXFo, vXFi, vO = 20, 21, 22, 23, 25
    work = []
    hq = hl[nh0:]; dq = [(g, k) for g in range(NPRE, len(GS)) for k in range(4)]
    def h_earliest(q, k):
        need = SO.index(KG[q][0]) + 1
        x = min(v for n, v in stage_ok.items() if n >= need)
        if q >= 11: x = max(x, 4 * (last_g[q - 11] + 1))
        return x
    def h_dead(q): return 4 * first_g[q] - o.get("h_lead", 8)
    def d_earliest(g): return max(4 * (g - 10) + 6, 0)
    def d_dead(g): return 4 * g - 2 - o.get("d_lead", 8) - (o.get("d_lead3", 12) if g >= gII else 0)
    items = [(h_dead(q), n, "h", (q, k, mi), h_earliest(q, k)) for n, (q, k, mi) in enumerate(hq)]
    items += [(d_dead(g) - (DL if k == 0 else 0), 1000 + n, "L" if (k == 0 and DL) else "d", (g, k), d_earliest(g)) for n, (g, k) in enumerate(dq)]
    items.sort()
    rate = o.get("rate", 2)
    ust = 4 * gII + 1 + o.get("x_delay", 0)
    nxs = 4 if BF16X else 8
    ufl = ust + o.get("x_flag", 10)
    upl = ufl + o.get("x_poll", 8)
    uck = upl + o.get("x_chk", 5)
    def give_ops(k):
        if BF16X:
            d = acc2(0, 0, 0) + 8 * k
            pre = [f"v_cvt_pk_bf16_f32 v{d+r}, v{d+2*r}, v{d+2*r+1}" for r in range(4)]
        else:
            d = acc2(0, 0, 0) + 4 * k; pre = []
        if k == 4: pre.append(f"v_add_u32 v{vXO}, 0x1000, v{vXO}")
        return (pre, Op(f"buffer_store_dwordx4 v[{d}:{d+3}], v{vXO}, s[{sH}:{sH+3}], 0 offen offset:{(k % 4)*1024} sc1", vm=("gs", k)))
    def recv_ops(k):
        d = acc2(0, 0, 0) + (8 * k if BF16X else 4 * k)
        pre = [f"v_add_u32 v{vXI}, 0x1000, v{vXI}"] if k == 4 else []
        return (pre, Op(f"buffer_load_dwordx4 v[{d}:{d+3}], v{vXI}, s[{sH}:{sH+3}], 0 offen offset:{(k % 4)*1024} sc1", vm=("rc", k)))
    xflag = [Op(f"buffer_store_dword v{vT+6}, v{vXFo}, s[{sH}:{sH+3}], 0 offen sc1", nvm=[("gs", nxs - 1)], vm="xf")]
    xpoll = Op(f"buffer_load_dword v{vPD}, v{vXFi}, s[{sH}:{sH+3}], 0 offen sc1", vm="pX")
    def xcheck(): return check("pX", 0, ld=xpoll.text, cmp=f"v_cmp_gt_u32 vcc, v{vT+7}, v{vPD}")
    setup2 = [f"v_accvgpr_read_b32 v{vXFo}, a{PARK+0}", f"v_accvgpr_read_b32 v{vXFi}, a{PARK+1}", f"v_accvgpr_read_b32 v{vXO}, a{PARK+2}",
              f"v_accvgpr_read_b32 v{vXI}, a{PARK+3}", f"v_accvgpr_read_b32 v{vT+7}, a{PARK+12}", f"v_mov_b32 v{vT+6}, 1", f"v_accvgpr_read_b32 v{vO}, a{PARK+8}", ""]
    u_def = [None]
    gs_left = list(range(nxs)); rc_left = list(range(nxs)); xstate = 0
    for u in range(NU):
        fill = Fill()
        g, j = divmod(u, 4)
        bar_next = (j == 1 and g + 1 < len(GS))
        if u + 2 < NU:
            for k, r in enumerate(rd2(u + 2)): fill.add(min(k, 6) if bar_next else k, r)
        p = 0
        def put(pre, op):
            nonlocal p
            for x in pre: p = fill.place(p, x, hi=6)
            if pre: p += 1
            p = fill.place(min(p, 6), op, hi=6)
            p = min(p + o.get("vsp", 2), 6)
        for kind, ops in atu.get(u, []):
            if kind != "ck": put(ops[:-1], ops[-1])
        if u in o.get("ct_units", []): put([], code_touch())
        if 20 <= u < 28: fill.place(5, setup2[u - 20], hi=7)
        n = 0
        if u >= ust and gs_left:
            for _ in range(1 if BF16X else 2):
                put(*give_ops(gs_left.pop(0))); n += 1
        if xstate == 3 and rc_left:
            for _ in range(2):
                put(*recv_ops(rc_left.pop(0))); n += 1
        rt = rate if isinstance(rate, int) else int((u + 1) * rate) - int(u * rate)
        i = 0
        blocked = set()
        while n < o.get("rate_max", 3) and i < len(items):
            dl, _, kind, x, ea = items[i]
            if n >= rt and dl > u: break
            if kind == "h" and deferred and HS[x[0] % 11] == ("v", 224): ea = u + 1
            if ea <= u and kind not in blocked:
                items.pop(i); put(*(hload(*x) if kind == "h" else dma2(*x))); n += 1
            else:
                blocked.add(kind); i += 1
        if u >= o.get("defer_from", 2):
            nd = 0
            for g_ in range(7):
                if deferred and fill.load(g_) < 2 and nd < o.get("defer_rate", 4): fill.add(g_, deferred.pop(0)); nd += 1
            if not deferred and u_def[0] is None: u_def[0] = u
        for kind, ops in atu.get(u, []):
            if kind == "ck": fill.add(7, ops)
        if xstate == 0 and u >= ufl and not gs_left: fill.add(7, [sat("y0")] + xflag + [sat("y1")]); xstate = 1
        elif xstate == 1 and u >= upl: fill.add(7, xpoll); xstate = 2
        elif xstate == 2 and u >= uck: fill.add(7, [sat("y2")] + xcheck() + [sat("y3")]); xstate = 3
        if u == 4 * 2 * q1 - 1: fill.add(7, sat("pI"))
        if u == 4 * gII - 1: fill.add(7, sat("pII"))
        fill.add(7, sat(f"u{u}"))
        if bar_next: fill.add(7, [Op("", nvm=[("d", g + 1)], nlg=[("r", u + 1)]), "s_barrier"])
        e.weave(mf2(u), fill)
    assert not items, items
    e(sat("pIII"))
    e("s_nop 7")
    for k in gs_left: p = give_ops(k); e(p[0]); e(p[1])
    e(sat("x0"))
    if xstate == 0: e(xflag); xstate = 1
    e(sat("x1"))
    if xstate == 1: e(xpoll); xstate = 2
    if xstate == 2: e(xcheck())
    e(sat("x2"))
    for k in rc_left: p = recv_ops(k); e(p[0]); e(p[1])
    if "x3" in STAT: e("s_waitcnt vmcnt(0)"); e(sat("x3"))
    for mi in range(2):
        for jp in range(2):
            d0, g0 = acc2(1, mi, 2 * jp), acc2(0, mi, 2 * jp)
            if BF16X:
                e.wait(nvm=[("rc", mi * 2 + jp)])
                for r in range(4):
                    e(f"v_lshlrev_b32 v{g0+4}, 16, v{g0+r}\nv_and_b32 v{g0+5}, 0xffff0000, v{g0+r}\nv_add_f32 v{d0+2*r}, v{d0+2*r}, v{g0+4}\nv_add_f32 v{d0+2*r+1}, v{d0+2*r+1}, v{g0+5}")
            else:
                e.wait(nvm=[("rc", mi * 4 + 2 * jp + 1)])
                for r in range(8): e(f"v_add_f32 v{d0+r}, v{d0+r}, v{g0+r}")
            r = g0
            e(f"""v_cvt_pk_bf16_f32 v{r}, v{d0}, v{d0+1}
            v_cvt_pk_bf16_f32 v{r+1}, v{d0+2}, v{d0+3}
            v_cvt_pk_bf16_f32 v{r+2}, v{d0+4}, v{d0+5}
            v_cvt_pk_bf16_f32 v{r+3}, v{d0+6}, v{d0+7}
            s_mov_b32 s{t0}, {mi*16*2048}
            s_nop 0
            v_permlane16_swap_b32 v{r}, v{r+2}
            v_permlane16_swap_b32 v{r+1}, v{r+3}""")
            e(Op(f"buffer_store_dwordx4 v[{r}:{r+3}], v{vO}, s[{sX}:{sX+3}], s{t0} offen offset:{jp*64} {o.get('out_aux', 'nt')}", vm=True))
    e(sat("x4"))
    if ST:
        e("s_waitcnt vmcnt(0)")
        k = nst[0]; assert k <= 14, k
        nst[0] = 14; e(stamp()); e(stamp(True))
        e(f"""s_waitcnt lgkmcnt(0)
        s_cmp_lg_u32 s{s_w}, 0
        s_cbranch_scc1 L_end
        s_lshl_b32 s3, s2, 7
        s_add_u32 s3, s3, {STAMP_OFF}
        v_mov_b32 v28, s3
        s_mov_b64 exec, 1""")
        for i in range(16):
            r = 64 + 2 * (i if (i < k or i >= 14) else 14)
            e(f"v_mov_b32 v30, s{r}\nv_mov_b32 v31, s{r+1}\nglobal_store_dwordx2 v28, v[30:31], s[{sH}:{sH+1}] offset:{8*i}\ns_nop 1")
        e("s_waitcnt vmcnt(0)")
    e("L_end:\ns_endpgm")
    e(f"""L_hs_add:
    s_mov_b32 s{t0}, 1
    s_atomic_add s{t0}, s[{sG}:{sG+1}], 0
    s_branch L_hs_ret""")
    for lab, ld, cmp in spins:
        e(f"""{lab}:
        s_mov_b32 s3, 0x40000
        {lab}_loop:
        {ld}
        s_sub_u32 s3, s3, 1
        s_cmp_eq_u32 s3, 0
        s_waitcnt vmcnt(0)
        s_cbranch_scc1 {lab}_ret
        {cmp}
        s_cbranch_vccnz {lab}_loop
        s_branch {lab}_ret""")
    return descriptor(name, 512, 256)

def build(fn, **o):
    a = Asm()
    d = gen(a, NAME, o)
    a(".fill 8192, 4, 0xbf800000")
    wf = lambda t: wrap([(NAME, 256, 256, 163840)], t, [d])
    if o.get("visit", True): a.lines, n = add_pads(a.lines, wf)
    open(fn, "w").write(wf(a.text()))

if __name__ == "__main__":
    build("k4.s")
    build("k4_st.s", stamps=True)
```

```python
from gen4 import build
def ev(f1, p1, c1, f4=4, p4=12, c4=19): return {"fl1": ("b", f1), "pl1": ("b", p1), "ck1": ("b", c1), "fl4": ("u", f4), "pl4": ("u", p4), "ck4": ("u", c4)}
BEST = dict(stage_order=[0, 1, 2, 3], j_split=1, jb1=12, rd_early13=36, d2_gap=4, w15_every=4, q1=8, x_flag=8, x_poll=6, x_chk=4,
            j_cap=2, burst=2, early_h=True, b_rd=12, events=ev(5, 9, 12), nh0=8, nh_q=2, dlead=8, d_lead=4)
if __name__ == "__main__":
    build("best.s", **BEST)
    build("best_fp32.s", **dict(BEST, xbf16=False, q1=6, x_flag=14, x_poll=6, x_chk=4))
```

```python
from gen4 import build
def ev(f1, p1, c1, f4=4, p4=12, c4=19): return {"fl1": ("b", f1), "pl1": ("b", p1), "ck1": ("b", c1), "fl4": ("u", f4), "pl4": ("u", p4), "ck4": ("u", c4)}
BEST = dict(stage_order=[0, 1, 2, 3], j_split=1, jb1=20, rd_early13=36, d2_gap=4, w15_every=5, q1=8, x_flag=8, x_poll=6, x_chk=4,
            j_cap=2, burst=2, early_h=True, b_rd=12, events=ev(5, 9, 12), nh0=8, nh_q=2,
            wmask=True, rate=1.85, d_lead=6, d_lead3=0, h_lead=6, vsp=3, tail2=True, unp_units=0,
            w_aux_n=2, j_loose=True, dma_pos=[1, 3, 5, 16, 26, 36, 45, 54, 63, 71, 79, 86, 93, 99, 105, 110], burst_gap=0, d2_every=5, pb=60, pro_extra=10)
if __name__ == "__main__":
    build("best.s", **BEST)
```

```python
import sys, math
from asmlib import *
from pagefix import add_pads

MT = 112 * 1024
XCH_OFF = 0x1000000
SF_OFF = 0x1800000
XF_OFF = 0x1820000
WS_BYTES = 0x2000000
STAMP_OFF = 0x8000000
lg = lambda v: int(math.log2(v))

class Cnt:
    def __init__(self, mx, expect): self.n = 0; self.done = 0; self.tag = {}; self.mx = mx; self.cnt = {}; self.expect = expect
    def issue(self, tag):
        self.n += 1
        if tag is not True:
            self.tag[tag] = self.n; self.cnt[tag] = self.cnt.get(tag, 0) + 1
    def need(self, tags):
        k = 0
        for t in tags:
            assert t in self.tag, t
            assert self.cnt[t] == self.expect(t), (t, self.cnt[t])
            k = max(k, self.tag[t])
        if k <= self.done: return None
        c = min(self.n - k, self.mx)
        self.done = self.n - c
        return c

def exp_vm(t):
    if isinstance(t, str): return 1
    if t[0] == "hs": return 4 if t[1] < 3 else 2
    return {"x": 8, "w": 8, "d": 4, "h": 2}.get(t[0], 1)
def exp_lg(t): return {"x": 1, "w": 2, "r": 8}[t[0]]

class Op:
    def __init__(self, text, vm=None, lg=None, nvm=(), nlg=(), cost=4):
        self.text, self.vm, self.lg, self.nvm, self.nlg, self.cost = text, vm, lg, nvm, nlg, cost

class Em:
    def __init__(self, a): self.a = a; self.vm = Cnt(62, exp_vm); self.lg = Cnt(14, exp_lg)
    def wait(self, nvm=(), nlg=()):
        v = self.vm.need(nvm); l = self.lg.need(nlg)
        s = (f" vmcnt({v})" if v is not None else "") + (f" lgkmcnt({l})" if l is not None else "")
        if s: self.a("s_waitcnt" + s)
    def __call__(self, x):
        if callable(x) and not isinstance(x, Op): x = x()
        if isinstance(x, str): self.a(x); return
        if isinstance(x, (list, tuple)):
            for y in x: self(y)
            return
        self.wait(x.nvm, x.nlg)
        if x.text.endswith(" lds") and " m0," in self.a.lines[-1]: self.a("s_nop 0")
        if x.text.startswith("buffer_"):
            so = x.text.split("], ")[-1].split()[0]
            n = 0
            for l in reversed(self.a.lines[-6:]):
                if l.strip().startswith(f"v_readlane_b32 {so},"):
                    if n < 5: self.a(f"s_nop {4 - n}")
                    break
                if not l.endswith(":"): n += 1
        if x.text: self.a(x.text)
        if x.vm is not None: self.vm.issue(x.vm)
        if x.lg is not None: self.lg.issue(x.lg)
    def weave(self, mfmas, fill):
        self(fill.get(-1, []))
        for i, m in enumerate(mfmas):
            self(m); self(fill.get(i, []))
        for k in fill: assert k < len(mfmas), k

class Fill(dict):
    def add(self, p, x): self.setdefault(p, []).append(x)
    def load(self, p): return len([x for x in self.get(p, []) if x != ""])
    def slots(self, p, cost): return sum(cost(x) if not isinstance(x, list) else 3 for x in self.get(p, []) if x != "")
    def place_ds(self, p, x):
        while self.load(p) >= 2 or any(isinstance(y, Op) and y.lg is not None for y in self.get(p, [])): p += 1
        self.add(p, x); return p
    def place(self, p, x, cap=2, hi=10**9):
        while self.load(p) >= cap and p < hi: p += 1
        self.add(p, x); return p

def gen(a, name, o):
    e = Em(a)
    ST = o.get("stamps"); nst = [0]
    def stamp(real=False):
        if not ST or nst[0] >= 16: return ""
        r = 64 + 2 * nst[0]; nst[0] += 1
        return f"s_mem{'real' if real else ''}time s[{r}:{r+1}]"
    STAT = o.get("st_at", ["vis", "bar0", "t3", "t7", "t13", "t15", "ck1a", "ck1b", "epi", "pI", "pII", "pIII"])
    def sat(key):
        if key not in STAT: return ""
        if o.get("both"): return stamp(True) + "\n" + stamp(False)
        return stamp(o.get("real", False))
    kernel_begin(a, name)
    sX, sW, sH, sG, sD = 4, 8, 12, 60, 96
    sOUT = 100
    s_w, s_wm, s_wn, s_tm, s_tn, s_r, s_m0, s_mix = 16, 17, 18, 19, 20, 21, 22, 23
    sxo, sxm, swo, swm = 24, 32, 40, 48
    TW, TH = 24, 40
    t0, t1, t2, t3 = 56, 57, 58, 59
    vX, vW, vXR, vWR, vS2, vS3, vPF, vWg, vWk = 1, 2, 3, 7, 14, 15, 16, 17, 18
    vFl = 19
    vT = 20
    PARK = 240
    def gate(mt, s): return 32 + 64 * s + 4 * mt
    def up(mt, s): return 64 + 64 * s + 4 * mt
    def mixed(mt): return 224 + 4 * mt
    def acc(mt, j): return gate(mt, j) if j < 3 else (up(mt, j - 3) if j < 6 else mixed(mt))
    def fx(s, mt, kk): return s * 120 + (mt * 2 + kk) * 4
    def fw(s, j, kk): return s * 120 + 64 + (j * 2 + kk) * 4
    vLane, vQ, vM = 0, vT + 10, vT + 11
    e(stamp(True)); e(stamp())
    if o.get("diag"): e("s_memrealtime s[64:65]\ns_memtime s[66:67]")
    e(f"""
    s_cmp_ge_u32 s2, 256
    s_cbranch_scc1 L_end
    s_load_dwordx4 s[{sX}:{sX+3}], s[0:1], 0
    s_load_dwordx4 s[{sH}:{sH+3}], s[0:1], 16
    s_load_dwordx4 s[{sG}:{sG+3}], s[0:1], 40
    s_load_dwordx2 s[{sOUT}:{sOUT+1}], s[0:1], 32
    v_lshrrev_b32 v{vT}, 6, v0
    s_nop 0
    v_readfirstlane_b32 s{s_w}, v{vT}""")
    if o.get("ticket"):
        e(f"""
        s_getreg_b32 s{t0}, hwreg(HW_REG_HW_ID, 13, 2)
        s_getreg_b32 s{t1}, hwreg(HW_REG_XCC_ID, 0, 3)
        s_lshl_b32 s{t2}, s{t1}, 2
        s_add_u32 s{t2}, s{t2}, s{t0}
        s_lshl_b32 s{t2}, s{t2}, 3
        s_add_u32 s{t2}, s{t2}, 4
        s_mov_b32 s{t3}, 1
        v_mov_b32 v{vT+1}, 0
        s_cmp_lg_u32 s{s_w}, 0
        s_waitcnt lgkmcnt(0)
        s_cbranch_scc1 L_tk_wait
        s_atomic_add s{t3}, s[{sG}:{sG+1}], s{t2} glc
        s_waitcnt lgkmcnt(0)
        v_mov_b32 v{vT+2}, s{t3}
        ds_write_b32 v{vT+1}, v{vT+2}
        s_waitcnt lgkmcnt(0)
        L_tk_wait:
        s_barrier
        ds_read_b32 v{vT+2}, v{vT+1}
        s_waitcnt lgkmcnt(0)
        v_readfirstlane_b32 s{t3}, v{vT+2}
        s_barrier
        s_and_b32 s{t3}, s{t3}, 7
        s_lshl_b32 s{t0}, s{t0}, 3
        s_add_u32 s{t0}, s{t0}, s{t3}
        s_lshl_b32 s{t0}, s{t0}, 3
        s_add_u32 s2, s{t0}, s{t1}
        """)
    e(f"""
    s_getpc_b64 s[{t2}:{t3}]
    s_lshr_b32 s{t1}, s2, 3
    v_and_b32 v{vM}, 15, v0
    s_lshl_b32 s{t0}, s{t1}, 11
    v_lshl_add_u32 v{vT+1}, v{vM}, 7, s{t0}""")
    e(Op(f"global_load_dword v{vPF}, v{vT+1}, s[{t2}:{t3}]", vm=True))
    e(f"""
    v_and_b32 v{vLane}, 63, v0
    s_and_b32 s{s_tm}, s{t1}, 7
    s_lshr_b32 s{t3}, s{t1}, 3
    s_and_b32 s{t0}, s2, 7
    s_lshl_b32 s{t0}, s{t0}, 2
    s_add_u32 s{s_tn}, s{t0}, s{t3}
    s_and_b32 s{s_wm}, s{s_w}, 1
    s_lshr_b32 s{s_wn}, s{s_w}, 1
    v_lshrrev_b32 v{vQ}, 4, v{vLane}
    s_lshl_b32 s{t0}, s{s_wm}, 2
    v_or_b32 v{vT+3}, s{t0}, v{vQ}
    v_and_b32 v{vT+2}, 7, v{vLane}
    v_xor_b32 v{vT+1}, v{vT+3}, v{vT+2}
    v_lshlrev_b32 v{vT+1}, 4, v{vT+1}
    v_lshrrev_b32 v{vT+2}, 3, v{vLane}
    v_lshlrev_b32 v{vT+2}, 11, v{vT+2}
    s_lshl_b32 s{t1}, s{s_tm}, 19
    v_add3_u32 v{vX}, v{vT+1}, v{vT+2}, s{t1}
    v_lshl_or_b32 v{vT+1}, v{vT+3}, 1, s{s_wn}
    v_xor_b32 v{vT+1}, v{vT+1}, v{vM}""")
    if o.get("wmask"):
        e(f"""s_and_b32 s{t1}, s{s_tn}, 1
        s_lshl_b32 s{t1}, s{t1}, 1
        v_subrev_u32 v{vT+4}, s{t1}, v{vT+1}
        v_cmp_gt_u32 vcc, 14, v{vT+4}
        v_mov_b32 v{vT+4}, 0x4000000
        s_nop 0
        v_cndmask_b32 v{vT+1}, v{vT+4}, v{vT+1}, vcc""")
    e(f"""
    v_lshlrev_b32 v{vT+1}, 4, v{vT+1}
    v_mul_u32_u24 v{vT+2}, 7168, v{vQ}
    s_mul_i32 s{t1}, s{s_tn}, 224
    s_and_b32 s{t1}, s{t1}, 0xffffffc0
    v_add3_u32 v{vW}, v{vT+1}, v{vT+2}, s{t1}
    s_lshl_b32 s{t0}, s{t3}, 13
    s_lshl_b32 s{s_m0}, s{s_w}, 10
    s_or_b32 s{sxm}, s{t0}, s{s_m0}
    s_lshl_b32 s{sxo}, s{sxm}, 4
    s_xor_b32 s{sxm+1}, s{sxm}, 0x1000
    s_lshl_b32 s{sxo+1}, s{sxm+1}, 4
    s_lshr_b32 s{t1}, s{s_tm}, 1
    s_lshl_b32 s{t1}, s{t1}, 12
    s_and_b32 s{t0}, s{s_tm}, 1
    s_lshl_b32 s{t0}, s{t0}, 10
    s_or_b32 s{t0}, s{t0}, s{t1}
    s_lshl_b32 s{t1}, s{s_wm}, 11
    s_or_b32 s{t0}, s{t0}, s{t1}
    s_lshl_b32 s{t2}, s{s_wn}, 14
    s_mul_i32 s{swo}, s{t0}, 28
    s_or_b32 s{swm}, s{t0}, s{t2}""")
    for i in range(2, 8):
        e(f"s_xor_b32 s{sxm+i}, s{sxm}, {i << 12}\ns_lshl_b32 s{sxo+i}, s{sxm+i}, 4")
    for i in range(1, 8):
        c = ((i >> 1) << 12) | ((i & 1) << 10)
        e(f"s_xor_b32 s{t1}, s{t0}, {c}\ns_mul_i32 s{swo+i}, s{t1}, 28\ns_or_b32 s{swm+i}, s{t1}, s{t2}")
    vW1 = vT + 8
    e(f"""
    v_add_u32 v{vW1}, {64*7168}, v{vW}
    s_cmp_eq_u32 s{s_wn}, 0
    s_mov_b32 s{sW+2}, {1024*7168}
    s_mov_b32 s{sW+3}, 0x20000
    s_waitcnt lgkmcnt(0)
    s_cselect_b32 s{sW}, s{sX+2}, s{sH}
    s_cselect_b32 s{sW+1}, s{sX+3}, s{sH+1}
    s_mov_b32 s{sX+2}, {2048*2048}
    s_mov_b32 s{sX+3}, 0x20000
    """)
    XB = 65536
    NL, NLW = 2, 1
    def dma_x(t, i):
        return (f"s_add_u32 m0, s{sxm+i}, {XB + (t % 3) * 32768 - t * 128}",
                Op(f"buffer_load_dwordx4 v{vX}, s[{sX}:{sX+3}], s{sxo+i} offen offset:{t*128} lds", vm=("x", t)))
    def dma_w(t, i, v=None):
        aux = o.get("w_aux", "nt") if i < o.get("w_aux_n", NLW) else ""
        return (f"s_add_u32 m0, s{swm+i}, {(t % 2) * 32768}",
                Op(f"buffer_load_dwordx4 v{v or vW}, s[{sW}:{sW+3}], s{swo+i} offen {aux} lds", vm=("w", t)))
    def emit_dma(p): e(p[0]); e(p[1])
    def mix(p, q):
        out = []; p = list(p); q = list(q)
        while p or q:
            if p: out.append(p.pop(0))
            if q: out.append(q.pop(0))
        return out
    lead0 = [dma_x(0, i) for i in range(NL)] + [dma_w(0, i) for i in range(NLW)]
    lead1 = [dma_x(1, i) for i in range(NL)] + [dma_w(1, i, vW1) for i in range(NLW)]
    lead2 = [dma_x(2, i) for i in range(NL)]
    rest0 = mix([dma_w(0, i) for i in range(NLW, 8)], [dma_x(0, i) for i in range(NL, 8)])
    rest1 = mix([dma_w(1, i, vW1) for i in range(NLW, 8)], [dma_x(1, i) for i in range(NL, 8)])
    rest2 = [dma_x(2, i) for i in range(NL, 8)]
    mode = o.get("pro", 2)
    if mode == 1: seq = lead0 + lead1 + lead2 + rest0 + rest1 + rest2; n0 = len(lead0 + lead1 + lead2 + rest0)
    elif mode == 2: seq = lead0 + lead1 + rest0 + rest1 + lead2 + rest2; n0 = len(lead0 + lead1 + rest0)
    elif mode == 3: seq = lead0 + rest0 + lead1 + lead2 + rest1 + rest2; n0 = len(lead0 + rest0)
    elif mode == 4: seq = lead0 + rest0 + lead1 + rest1; n0 = len(lead0 + rest0)
    elif mode == 5: seq = lead0 + rest0[:5] + lead1 + rest0[5:] + rest1; n0 = len(lead0 + rest0 + lead1)
    elif mode == 6: seq = lead0 + lead1 + rest0 + rest1; n0 = len(lead0 + rest0 + lead1)
    xq = [(t, i) for t in range(3 if mode < 4 else 2, 16) for i in range(8)]
    npre = n0 + o.get("pro_extra", 8)
    nfirst = o.get("pro_first", 8)
    for p in seq[:nfirst]: emit_dma(p)
    e(sat("iss"))
    e(f"""
    s_mov_b32 s{sD}, s{sH+2}
    s_mov_b32 s{sD+1}, s{sH+3}
    s_mov_b32 s{sD+2}, {3584*2048}
    s_mov_b32 s{sD+3}, 0x20000
    s_mov_b32 s{sH}, s{sG+2}
    s_mov_b32 s{sH+1}, s{sG+3}
    s_mov_b32 s{sH+2}, {WS_BYTES}
    s_mov_b32 s{sH+3}, 0x20000
    s_mov_b32 s{sG+2}, 256
    s_mov_b32 s{sG+3}, 0x20000
    """)
    NRS = o.get("nrs", 32); FLW = o.get("flw", 32)
    e(f"""
    s_lshl_b32 s{t0}, s{s_tm}, 1
    s_add_u32 s{t0}, s{t0}, s{s_wm}
    s_lshl_b32 s{t0}, s{t0}, 5
    s_add_u32 s{t0}, s{t0}, s{s_tn}
    s_lshl_b32 s{t0}, s{t0}, 8
    s_lshl_b32 s{t1}, s{s_wn}, 7
    s_add_u32 s{t0}, s{t0}, s{t1}
    s_add_u32 s{t0}, s{t0}, {SF_OFF}
    s_xor_b32 s{t1}, s2, 1
    s_lshl_b32 s{t1}, s{t1}, 2
    s_add_u32 s{t1}, s{t1}, s{s_w}
    s_lshl_b32 s{t2}, s{t1}, 7
    s_add_u32 s{t2}, s{t2}, {XF_OFF}
    v_lshrrev_b32 v{vT}, {lg(FLW)}, v{vLane}
    v_lshlrev_b32 v{vT}, 25, v{vT}
    v_lshl_add_u32 v{vT}, v{vLane}, 2, v{vT}
    v_add_u32 v{vFl}, s{t0}, v{vT}
    v_add_u32 v{vT+1}, s{t2}, v{vT}
    v_accvgpr_write_b32 a{PARK+0}, v{vT+1}
    v_lshlrev_b32 v{vT}, 25, v{vLane}
    s_lshl_b32 s{t0}, s2, {18 - lg(NRS)}
    s_lshl_b32 s{t3}, s{s_w}, {16 - lg(NRS)}
    s_add_u32 s{t0}, s{t0}, s{t3}
    s_cmp_lt_u32 s2, {NRS}
    s_cselect_b32 s{t0}, s{t0}, {WS_BYTES}
    s_add_u32 s{t0}, s{t0}, {SF_OFF}
    v_lshl_add_u32 v{vT+2}, v{vLane}, 4, s{t0}
    v_mov_b32 v{vT+4}, 0
    v_mov_b32 v{vT+5}, 0
    v_mov_b32 v{vT+6}, 0
    v_mov_b32 v{vT+7}, 0""")
    nrst = 64 // NRS
    assert 1 <= nrst <= 4
    for i in range(nrst):
        e(Op(f"buffer_store_dwordx4 v[{vT+4}:{vT+7}], v{vT+2}, s[{sH}:{sH+3}], 0 offen offset:{i*1024} sc1", vm="reset" if i == nrst - 1 else True))
    e(f"""
    s_xor_b32 s{t2}, s{t2}, 512
    v_add_u32 v{vT+1}, s{t2}, v{vT}
    v_accvgpr_write_b32 a{PARK+1}, v{vT+1}
    v_lshlrev_b32 v{vT+4}, 4, v{vLane}
    s_lshl_b32 s{t1}, s{t1}, 13
    s_add_u32 s{t1}, s{t1}, {XCH_OFF}
    v_add_u32 v{vT+1}, s{t1}, v{vT+4}
    v_accvgpr_write_b32 a{PARK+2}, v{vT+1}
    v_xor_b32 v{vT+1}, 0x8000, v{vT+1}
    v_accvgpr_write_b32 a{PARK+3}, v{vT+1}
    """)
    e(f"""
    v_lshrrev_b32 v{vT+2}, 1, v{vM}
    v_xor_b32 v{vT+2}, v{vT+2}, v{vQ}
    v_lshlrev_b32 v{vT+2}, 4, v{vT+2}
    v_lshlrev_b32 v{vT+3}, 7, v{vM}
    s_lshl_b32 s{t0}, s{s_wm}, 14
    s_add_u32 s{t0}, s{t0}, {XB}
    v_add3_u32 v{vXR}, v{vT+2}, v{vT+3}, s{t0}
    v_xor_b32 v{vXR+1}, 64, v{vXR}
    v_add_u32 v{vXR+2}, 0x10000, v{vXR}
    v_add_u32 v{vXR+3}, 0x10000, v{vXR+1}
    v_bfe_u32 v{vT+2}, v{vLane}, 2, 2
    v_and_b32 v{vT+1}, 1, v{vQ}
    v_lshl_or_b32 v{vT+3}, v{vT+1}, 2, v{vT+2}
    v_lshl_add_u32 v{vT}, v{vQ}, 3, v{vT+2}
    v_lshlrev_b32 v{vT+4}, 8, v{vT}
    v_and_b32 v{vT+5}, 3, v{vLane}
    v_lshlrev_b32 v{vT+6}, 3, v{vT+5}
    s_and_b32 s{t0}, s{s_tn}, 1
    s_lshl_b32 s{t1}, s{s_wn}, 2
    s_add_u32 s{t1}, s{t1}, s{t0}
    """)
    for j in range(3):
        e(f"""s_add_u32 s{t2}, s{t1}, {j}
        v_xor_b32 v{vT+7}, s{t2}, v{vT+3}
        v_lshlrev_b32 v{vT+7}, 5, v{vT+7}
        v_add3_u32 v{vWR+j}, v{vT+7}, v{vT+4}, v{vT+6}
        v_xor_b32 v{vT+7}, 16, v{vWR+j}
        v_add_u32 v{vWR+3+j}, 0x4000, v{vT+7}""")
    e(f"""s_add_u32 s{t2}, s{t0}, 3
    v_xor_b32 v{vT+7}, s{t2}, v{vT+3}
    v_lshlrev_b32 v{vT+7}, 5, v{vT+7}
    v_lshrrev_b32 v{vT+3}, 1, v{vT+5}
    v_add_u32 v{vT+7}, v{vT+7}, v{vT+4}
    v_xor_b32 v{vT+4}, s{s_wn}, v{vT+3}
    v_lshlrev_b32 v{vT+4}, 4, v{vT+4}
    v_lshlrev_b32 v{vT+3}, 14, v{vT+3}
    v_add3_u32 v{vT+7}, v{vT+7}, v{vT+4}, v{vT+3}
    v_and_b32 v{vT+3}, 8, v{vT+6}
    v_add_u32 v{vWR+6}, v{vT+7}, v{vT+3}
    """)
    e(f"""
    v_lshlrev_b32 v{vT}, 7, v{vT+2}
    v_lshl_add_u32 v{vT}, v{vQ}, 12, v{vT}
    v_lshrrev_b32 v{vT+2}, 1, v{vT+2}
    v_lshl_or_b32 v{vT+2}, v{vT+1}, 1, v{vT+2}""")
    for j in range(4):
        e(f"v_xor_b32 v{vT+3}, {j}, v{vT+2}\nv_lshlrev_b32 v{vT+3}, 5, v{vT+3}\nv_add3_u32 v{vT+3}, v{vT+3}, v{vT}, v{vT+6}\nv_accvgpr_write_b32 a{PARK+4+j}, v{vT+3}")
    e(f"""
    s_lshl_b32 s{t0}, s{s_tm}, 1
    s_add_u32 s{t0}, s{t0}, s{s_wm}
    s_mul_i32 s{t0}, s{t0}, {8*MT}
    s_lshr_b32 s{t1}, s{s_tn}, 4
    s_mul_i32 s{t1}, s{t1}, {56*1024}
    s_add_u32 s{t0}, s{t0}, s{t1}
    s_and_b32 s{t1}, s{s_tn}, 15
    s_lshl_b32 s{t1}, s{t1}, 1
    s_add_u32 s{t1}, s{t1}, s{s_wn}
    s_lshl_b32 s{t2}, s{t1}, 9
    s_add_u32 s{t2}, s{t2}, s{t0}
    s_lshl_b32 s{t1}, s{t1}, 8
    s_add_u32 s{t1}, s{t1}, s{t0}
    s_add_u32 s{t1}, s{t1}, {48*1024}
    v_lshlrev_b32 v{vT}, 4, v{vM}
    v_lshrrev_b32 v{vT+3}, 1, v{vQ}
    v_lshl_or_b32 v{vT+4}, v{vT+1}, 1, v{vT+3}
    v_mul_u32_u24 v{vT+5}, {MT}, v{vT+1}
    v_lshlrev_b32 v{vT+6}, 8, v{vT+3}
    v_add3_u32 v{vT+5}, v{vT+5}, v{vT+6}, v{vT}
    v_add_u32 v{vS2}, s{t2}, v{vT+5}
    v_mul_u32_u24 v{vT+5}, {MT}, v{vT+4}
    v_add3_u32 v{vS3}, v{vT+5}, v{vT}, s{t1}
    """)
    pf_steps = o.get("pf_steps", [1, 2, 3, 4, 5, 6, 7])
    PFL = 56 // max(len(pf_steps), 1); assert not pf_steps or PFL * len(pf_steps) == 56
    e(f"""
    s_bfe_u32 s{t0}, s2, 0x20001
    s_lshl_b32 s{t0}, s{t0}, 2
    s_bfe_u32 s{t1}, s2, 0x20003
    s_add_u32 s{s_tm}, s{t0}, s{t1}
    s_lshr_b32 s{s_tn}, s2, 5
    s_mul_i32 s{s_mix}, s{s_wn}, {48*2048}
    s_and_b32 s{t3}, s2, 1
    v_lshlrev_b32 v{vT+2}, 11, v{vM}
    v_lshlrev_b32 v{vT+4}, 4, v{vT+4}
    s_lshl_b32 s{t0}, s{s_tm}, 18
    s_lshl_b32 s{t1}, s{s_w}, 16
    s_add_u32 s{t0}, s{t0}, s{t1}
    s_lshl_b32 s{t2}, s{s_tn}, 8
    s_lshl_b32 s{t1}, s{t3}, 7
    s_add_u32 s{t2}, s{t2}, s{t1}
    s_add_u32 s{t0}, s{t0}, s{t2}
    v_add3_u32 v{vT+2}, v{vT+2}, v{vT+4}, s{t0}
    v_accvgpr_write_b32 a{PARK+8}, v{vT+2}
    v_lshrrev_b32 v{vT}, 3, v{vLane}
    v_and_b32 v{vT+1}, 2, v{vT}
    v_and_b32 v{vT+2}, 7, v{vLane}
    v_xor_b32 v{vT+1}, v{vT+1}, v{vT+2}
    s_lshl_b32 s{t1}, s{s_wm}, 2
    v_xor_b32 v{vT+1}, s{t1}, v{vT+1}
    v_lshlrev_b32 v{vT+1}, 4, v{vT+1}
    v_lshlrev_b32 v{vT}, 11, v{vT}
    s_mul_i32 s{t0}, s{t3}, 1792
    s_lshl_b32 s{t1}, s{s_wn}, 6
    s_add_u32 s{t0}, s{t0}, s{t1}
    s_lshl_b32 s{t1}, s{s_wm}, 3
    s_add_u32 s{t0}, s{t0}, s{t1}
    s_lshl_b32 s{t0}, s{t0}, 11
    s_add_u32 s{t0}, s{t0}, s{t2}
    v_add3_u32 v{vWk}, v{vT}, v{vT+1}, s{t0}
    v_xor_b32 v{vWg}, 0x80, v{vWk}
    s_lshl_b32 s{t0}, s{s_tm}, 2
    s_add_u32 s{t0}, s{t0}, s{s_w}
    s_mul_i32 s{t0}, s{t0}, {2*MT}
    s_mul_i32 s{t1}, s{t3}, {56*1024}
    s_add_u32 s{t0}, s{t0}, s{t1}
    v_lshl_add_u32 v{vT}, v{vLane}, 4, s{t0}
    v_accvgpr_write_b32 a{PARK+9}, v{vT}
    s_lshl_b32 s{t0}, s{s_tm}, 1
    s_add_u32 s{t0}, s{t0}, s{t3}
    s_lshl_b32 s{t0}, s{t0}, 12
    s_add_u32 s{t0}, s{t0}, {SF_OFF}
    v_and_b32 v{vT}, 31, v{vLane}
    v_lshl_add_u32 v{vT}, v{vT}, 7, s{t0}
    v_accvgpr_write_b32 a{PARK+10}, v{vT}
    s_lshl_b32 s{t0}, s2, 2
    s_add_u32 s{t0}, s{t0}, s{s_w}
    s_mul_i32 s{t0}, s{t0}, {PFL * 128}
    v_min_u32 v{vT+2}, {PFL - 1}, v{vLane}
    v_lshl_add_u32 v{vT+7}, v{vT+2}, 7, s{t0}
    v_mov_b32 v{vT+9}, 0
    v_min_u32 v{vT+4}, 1, v{vLane}
    v_xor_b32 v{vT+4}, 1, v{vT+4}
    v_accvgpr_write_b32 a{PARK+12}, v{vT+4}
    """)
    vPFA, vDbg, vOne = vT + 7, vT + 9, vT + 6
    vDum = vT + 11
    e(f"s_lshl_b32 s{s_r}, s{s_w}, 12")
    GR = o.get("grot", 0)
    if GR: e(f"s_add_u32 s{s_tm}, s{s_tm}, s{s_tn}\ns_and_b32 s{s_tm}, s{s_tm}, {GR}\ns_and_b32 s{s_tn}, s{s_tm}, 1")
    if o.get("visit", True):
        e(f"""s_mov_b64 exec, 0
        s_cmp_eq_u32 s{s_w}, 0
        s_cbranch_scc1 L_pad0
        s_cmp_eq_u32 s{s_w}, 1
        s_cbranch_scc1 L_pad1
        s_cmp_eq_u32 s{s_w}, 2
        s_cbranch_scc1 L_pad2
        s_branch L_pad3
        L_pad_ret:
        s_mov_b64 exec, -1""")
    e(sat("vis"))
    for p in seq[nfirst:npre]: emit_dma(p)
    e(f"v_add_u32 v{vW}, {128*7168}, v{vW}")
    wstep = f"v_add_u32 v{vW}, {64*7168}, v{vW}"
    def rd_x(t, mt, kk):
        xs = t % 3
        xb = vXR + kk + (2 if xs == 2 else 0); xo = xs * 32768 if xs < 2 else 0
        r = fx(t % 2, mt, kk)
        return Op(f"ds_read_b128 a[{r}:{r+3}], v{xb} offset:{xo + mt*2048}", lg=("x", t, mt, kk))
    def rd_w(t, j, kk):
        out = []
        for hi in range(2):
            r = fw(t % 2, j, kk) + 2 * hi
            out.append(Op(f"ds_read_b64_tr_b16 a[{r}:{r+1}], v{vWR+j} offset:{(t % 2)*32768 + kk*8192 + hi*1024}", lg=("w", t, j, kk)))
        return out
    started = set()
    def mf1(t, mt, j, kk):
        d = acc(mt, j)
        c = f"v[{d}:{d+3}]" if d in started else "0"
        started.add(d)
        A, B = fw(t % 2, j, kk), fx(t % 2, mt, kk)
        return Op(f"v_mfma_f32_16x16x32_bf16 v[{d}:{d+3}], a[{A}:{A+3}], a[{B}:{B+3}], {c}", nlg=[("w", t, j, kk), ("x", t, mt, kk)])
    def order_m():
        prs = []
        for mp in range(4):
            for n, j in enumerate(range(7)):
                prs += [(2*mp, j), (2*mp+1, j)] if n % 2 == 0 else [(2*mp+1, j), (2*mp, j)]
        return prs
    def order_n():
        prs = []
        for s in range(3):
            for mt in range(8):
                prs += [(mt, s), (mt, 3 + s)] if mt % 2 == 0 else [(mt, 3 + s), (mt, s)]
        prs += [(mt, 6) for mt in range(8)]
        return prs
    def step_seq(prs):
        out = []
        for n, (mt, j) in enumerate(prs):
            out += [(mt, j, 0), (mt, j, 1)] if (n % 2 == 0 or not o.get("kalt", True)) else [(mt, j, 1), (mt, j, 0)]
        return out
    def reads_for(t, sq):
        out = []; seen = set()
        for (mt, j, kk) in sq:
            if ("x", mt, kk) not in seen: seen.add(("x", mt, kk)); out.append(rd_x(t, mt, kk))
            if ("w", j, kk) not in seen: seen.add(("w", j, kk)); out += rd_w(t, j, kk)
        return out
    NS = 16
    seqs = [step_seq(order_m()) for t in range(NS)]
    seqs[15] = step_seq(order_n())
    q1 = o.get("q1", 6)
    GS = []
    for q in range(q1): GS += [(q, 0), (q, 1)]
    GS += [(q, 0) for q in range(q1, 14)] + [(q, 1) for q in range(q1, 14)]
    def slot_addr(g): return ((6 + g) % 10) * 16384
    SO = o.get("stage_order", [3, 0, 1, 2])
    KG = []
    for st_ in SO: KG += [(st_, i) for i in range(2 if st_ == 3 else 4)]
    wstage = {}; nlit = [0]; cur_m0 = [None]
    def dma2(g, k):
        q, hf = GS[g]; st_, gi = KG[q]
        v = vWk if hf else vWg
        pre = []
        old = wstage.get(v, 0)
        if st_ != old:
            pre.append(f"v_add_u32 v{v}, {(st_ - old) * 16 * 2048}, v{v}")
            if st_ == 3: pre.append(f"v_add_u32 v{v}, s{s_mix}, v{v}")
            if old == 3: pre.append(f"v_subrev_u32 v{v}, s{s_mix}, v{v}")
            wstage[v] = st_
        if cur_m0[0] != g: pre.append(f"s_add_u32 m0, s{s_r}, {slot_addr(g)}"); cur_m0[0] = g
        if st_ < 3: sr = f"s{TW + 4*gi + k}"
        elif GR:
            sr = f"s{TH + 8 + nlit[0] % 4}"; nlit[0] += 1
            pre.append(f"s_add_u32 {sr}, s{TH + 6 + gi}, {k * 224 * 2048 - k * 1024}")
        elif gi == 0 and k == 0: sr = "0"
        else:
            sr = f"s{TH + 8 + nlit[0] % 4}"; nlit[0] += 1
            pre.append(f"s_mov_b32 {sr}, {(4*gi + k) * 224 * 2048 - k * 1024}")
        if o.get("d2_skip") and g < 10: return (pre, Op("s_nop 0", vm=("d", g)))
        if o.get("no_d") and g >= 10: return ([], Op("s_nop 0", vm=("d", g)))
        return (pre, Op(f"buffer_load_dwordx4 v{v}, s[{sD}:{sD+3}], {sr} offen offset:{k*1024} lds", vm=("d", g)))
    tw_ops = [f"s_mov_b32 s{TW+i}, {i * 112 * 2048 - (i & 3) * 1024}" for i in range(16)]
    th_ops = []
    if GR:
        assert SO == [0, 1, 2, 3]
        tw_ops = []
        for gi in range(4):
            tw_ops += [f"s_xor_b32 s{TW+4*gi}, s{s_tm}, {gi}", f"s_mul_i32 s{TW+4*gi}, s{TW+4*gi}, {4*112*2048}"]
            tw_ops += [f"s_add_u32 s{TW+4*gi+k}, s{TW+4*gi}, {k * 112 * 2048 - k * 1024}" for k in range(1, 4)]
        th_ops = [f"s_lshl_b32 s{TH+4}, s{s_tm}, 12", f"s_lshl_b32 s{TH+5}, s{s_tn}, 12", f"s_mul_i32 s{TH+6}, s{s_tn}, {4*224*2048}",
                  f"s_sub_u32 s{TH+7}, {4*224*2048}, s{TH+6}"]
    vPoll, vPD = 28, 29
    THS = o.get("t_hs", 10)
    hs_ld = f"buffer_load_dword v{vOne}, v{vDbg}, s[{sG}:{sG+3}], 0 offen sc1"
    spins = []
    def poll(tag): return Op(f"buffer_load_dword v{vPD}, v{vPoll}, s[{sH}:{sH+3}], 0 offen sc1", vm=tag)
    nlab = [0]
    def check(tag, n, reg=vPD, ld=None, cmp=None, inline=None):
        lab = f"L_spin{nlab[0]}"; nlab[0] += 1
        cmp = cmp or f"v_cmp_gt_u32 vcc, {n}, v{reg}"
        if o.get("inline", True) if inline is None else inline:
            return [Op(cmp, nvm=[tag]), f"""s_cbranch_vccz {lab}_ret
            s_mov_b32 s3, 0x40000
            {lab}_loop:
            {ld or poll(0).text}
            s_sub_u32 s3, s3, 1
            s_cmp_eq_u32 s3, 0
            s_waitcnt vmcnt(0)
            s_cbranch_scc1 {lab}_ret
            {cmp}
            s_cbranch_vccnz {lab}_loop
            {lab}_ret:"""]
        spins.append((lab, ld or poll(0).text, cmp))
        return [Op(cmp, nvm=[tag]), f"s_cbranch_vccnz {lab}", f"{lab}_ret:"]
    e("s_branch L_main\n.p2align 12\nL_main:")
    e.wait(nvm=[("x", 0), ("w", 0), "reset"]); e("s_barrier")
    e(sat("bar0"))
    PB = o.get("pb", 56)
    P0 = 112 * 14
    MS = []
    for t in range(14): MS += [(t,) + x for x in step_seq(order_m())]
    def stage_tiles(st_):
        if st_ == 3: return [(mt, 6) for mt in range(8)]
        out = []
        for mt in range(8): out += [(mt, st_), (mt, 3 + st_)] if mt % 2 == 0 else [(mt, 3 + st_), (mt, st_)]
        return out
    nsplit = o.get("j_split", 2)
    for st_ in SO[:nsplit]: MS += [(14,) + x for x in step_seq(stage_tiles(st_))]
    for st_ in SO[:nsplit]: MS += [(15,) + x for x in step_seq(stage_tiles(st_))]
    for st_ in SO[nsplit:]:
        for n, (mt, j) in enumerate(stage_tiles(st_)):
            c = [(14, mt, j, 0), (14, mt, j, 1), (15, mt, j, 1), (15, mt, j, 0)]
            MS += c if n % 2 == 0 else c[::-1]
    assert len(MS) == 1792 and len(set(MS)) == 1792
    last_pos = {}
    for p, (t, mt, j, kk) in enumerate(MS): last_pos[(mt, j)] = p
    def rds(t): return reads_for(t, [x[1:] for x in MS if x[0] == t])
    fill = Fill()
    r0 = rds(0)
    n_first = o.get("rd_first", 12)
    e(r0[:n_first])
    for n, r in enumerate(r0[n_first:]): fill.add(n // 2 if n < 20 else n - 10, r)
    def put1(pos, p):
        pre = p[0] if isinstance(p[0], list) else [p[0]]
        for n, x in enumerate(pre): fill.add(pos - len(pre) + n, x)
        fill.add(pos, p[1])
        if len(p) > 2: fill.add(pos + 1, p[2])
    posl = o.get("dma_pos") or [1, 3, 5, 14, 23, 32, 41, 50, 59, 68, 77, 84, 91, 98, 104, 110]
    left = seq[npre:]
    for n, p in enumerate(left):
        pos = 2 + n * o.get("pro_every", 4); assert pos < (o.get("pbl") or [PB])[0] - 1
        put1(pos, p)
    NPRE = o.get("npre2", 10)
    pre2 = [(g, k) for g in range(NPRE) for k in range(4)]
    JB1 = P0 + o.get("jb1", 20); JB2 = JB1 + o.get("jb2", 48)
    prev_last = r0[-1]
    n_early = o.get("rd_early", 32)
    PBL = o.get("pbl", [])
    def pbt(t): return PBL[t] if t < len(PBL) else PB
    NX = o.get("nx", [])
    for t in range(14):
        b = 112 * t + pbt(t)
        plen = 112 + pbt(t + 1) - pbt(t)
        fill.add(b - 1, Op("", nvm=[("x", t + 1), ("w", t + 1)], nlg=[prev_last.lg])); fill.add(b - 1, "s_barrier")
        take_x = [x for x in xq[:NX[t] if t < len(NX) else 8] if x[0] <= t + 3]
        xq = xq[len(take_x):]
        assert not [x for x in xq if x[0] <= t + 2], (t, xq[:3])
        leads = [x for x in take_x if x[1] < NL]
        need_x = [x for x in take_x if x[1] >= NL and x[0] == t + 2]
        ahead = [x for x in take_x if x[1] >= NL and x[0] == t + 3]
        wl = [dma_w(t + 2, i) for i in range(8)]
        wl[-1] = wl[-1] + (wstep,)
        lst = [dma_x(*x) for x in leads] + wl[:1] + mix(wl[1:], [dma_x(*x) for x in need_x]) + [dma_x(*x) for x in ahead]
        if t == 13: pos = [1 + o.get("w15_every", 5) * n for n in range(8)]
        elif len(lst) == 16 and plen == 112 and not need_x: pos = posl
        else:
            nl = len(leads) + 1
            last = plen - (2 if ahead else o.get("need_margin", 30))
            first = 2 * nl + o.get("lead_gap", 6)
            pos = [1 + 2 * n for n in range(nl)] + [first + n * (last - first) // max(len(lst) - nl - 1, 1) for n in range(len(lst) - nl)]
        for pp, p in zip(pos, lst): put1(b + pp, p)
        if t == 13:
            p = b
            for n, x in enumerate(tw_ops): p = fill.place(p, x)
            assert p < b + pos[-1] + o.get("d2_gap", 8) - 4
            d0 = b + pos[-1] + o.get("d2_gap", 8)
            for n, x in enumerate(pre2[:8]): put1(d0 + 4 * n, dma2(*x))
            assert d0 + 28 < JB1 + 4
        if t == 1:
            fill.add(112, f"s_lshl_b32 s{t0}, s{s_w}, 8"); fill.add(113, f"s_add_u32 s{t0}, s{t0}, s2")
            fill.add(113, f"s_cmp_lt_u32 s{t0}, {NRS}\ns_cbranch_scc1 L_hs_add\nL_hs_ret:")
        if t == THS: fill.add(b + 9, Op(hs_ld, vm="hs"))
        if t == THS + 1: fill.add(b - 10, check("hs", 0, ld=hs_ld, cmp=f"v_cmp_gt_u32 vcc, {NRS}, v{vOne}", inline=False))
        if t in pf_steps:
            n = pf_steps.index(t)
            pp_ = o.get("pf_pos", 7)
            fill.add(b + pp_ - 1, f"s_mov_b32 s{t0}, {n * PFL * 128 * 1024}")
            fill.add(b + pp_, Op(f"buffer_load_dword v{vDum}, v{vPFA}, s[{sD}:{sD+3}], s{t0} offen", vm=True))
        fill.add(112 * t + 54, sat(f"t{t}a")); fill.add(112 * t + 110, sat(f"t{t}"))
        rr = rds(t + 1)
        ne = n_early if t < 13 else o.get("rd_early13", 30)
        span = 112 * t + 108 - b
        p = b - 1
        for n, r in enumerate(rr[:ne]): p = fill.place_ds(max(p + 1, b + n * span // ne), r)
        assert p < 112 * (t + 1)
        p = 112 * (t + 1) - 1
        for n, r in enumerate(rr[ne:]): p = fill.place_ds(p + (2 if t < 13 else 1), r)
        assert p < (112 * (t + 1) + pbt(t + 1) - 3 if t < 13 else JB1 - 1), p
        prev_last = rr[-1]
    fill.add(JB1 - 1, Op("", nvm=[("x", 15), ("w", 15)], nlg=[prev_last.lg])); fill.add(JB1 - 1, "s_barrier")
    d2e = o.get("d2_every", 4)
    d1 = max(JB1 + 4 + o.get("d2_off", 4), P0 + o.get("d2_late1", 0))
    for n, x in enumerate(pre2[8:min(24, 4 * NPRE)]): put1(d1 + d2e * n, dma2(*x))
    rr = rds(15); p = JB1 - 1
    for r in rr: p = fill.place_ds(p + 1, r)
    JB2 = max(JB2, p + 4)
    fill.add(JB2 - 1, Op("", nlg=[rr[-1].lg])); fill.add(JB2 - 1, "s_barrier")
    d0 = max(JB2 + 3, d1 + d2e * 16, P0 + o.get("d2_late", 0))
    d2e = o.get("d2_every2", d2e)
    for n, x in enumerate(pre2[24:4 * NPRE]): put1(d0 + d2e * n, dma2(*x))
    fill.add(1790, sat("t15"))
    vWR2 = 1
    vH0, vH1 = 13, 0
    sC, sOne = 56, 58
    u0, u1 = TH + 12, TH + 13
    fill.place(P0 + 1, f"s_mov_b32 s{sC}, 0xbfb8aa3b"); fill.place(P0 + 2, f"s_mov_b32 s{sC+1}, 0xbfb8aa3b")
    fill.place(P0 + 3, f"s_mov_b32 s{sOne}, 1.0"); fill.place(P0 + 4, f"s_mov_b32 s{sOne+1}, 1.0")
    fill.place(P0 + 5, f"s_mov_b32 s{sX}, s{sOUT}"); fill.place(P0 + 6, f"s_mov_b32 s{sX+1}, s{sOUT+1}")
    p = fill.place(P0 + 7, f"v_accvgpr_read_b32 v{vPoll}, a{PARK+10}")
    for x in th_ops: p = fill.place(p, x)
    setup1 = [f"v_accvgpr_read_b32 v{vWR2+j}, a{PARK+4+j}" for j in range(4)] + [f"v_accvgpr_read_b32 v{vH0}, a{PARK+9}"]
    for j in range(4): setup1 += [f"v_add_u32 v{vWR2+4+j}, 0x10000, v{vWR2+j}", f"v_add_u32 v{vWR2+8+j}, 0x20000, v{vWR2+j}"]
    setup1 += [f"v_add_u32 v{vH1}, {MT}, v{vH0}"]
    def quad(g, u, dst):
        out = [f"v_mul_f32 v{u+r}, v{g+r}, v{u+r}" for r in range(4)]
        out += [f"v_mul_f32 v{g+r}, s{sC}, v{g+r}" for r in range(4)]
        out += [f"v_exp_f32 v{g+r}, v{g+r}" for r in range(4)]
        out += [f"v_add_f32 v{g+r}, 1.0, v{g+r}" for r in range(4)]
        out += [f"v_rcp_f32 v{g+r}, v{g+r}" for r in range(4)]
        out += [f"v_mul_f32 v{u+r}, v{g+r}, v{u+r}" for r in range(4)]
        out += [f"v_cvt_pk_bf16_f32 v{dst}, v{u}, v{u+1}", f"v_cvt_pk_bf16_f32 v{dst+1}, v{u+2}, v{u+3}"]
        return out
    def pk(op, d, x, y): return f"v_pk_{op}_f32 v[{d}:{d+1}], v[{x}:{x+1}], {y}"
    def quad_pk(g, u, dst):
        V = lambda r: f"v[{r}:{r+1}]"
        C, ONE = f"s[{sC}:{sC+1}]", f"s[{sOne}:{sOne+1}]"
        return [pk("mul", u, g, V(u)), pk("mul", g, g, C), pk("mul", u + 2, g + 2, V(u + 2)), f"v_exp_f32 v{g}, v{g}", pk("mul", g + 2, g + 2, C),
                f"v_exp_f32 v{g+1}, v{g+1}", f"v_exp_f32 v{g+2}, v{g+2}", pk("add", g, g, ONE), f"v_exp_f32 v{g+3}, v{g+3}", f"v_rcp_f32 v{g}, v{g}",
                pk("add", g + 2, g + 2, ONE), f"v_rcp_f32 v{g+1}, v{g+1}", f"v_rcp_f32 v{g+2}, v{g+2}", pk("mul", u, g, V(u)), f"v_rcp_f32 v{g+3}, v{g+3}",
                f"v_cvt_pk_bf16_f32 v{dst}, v{u}, v{u+1}", pk("mul", u + 2, g + 2, V(u + 2)), f"v_cvt_pk_bf16_f32 v{dst+1}, v{u+2}, v{u+3}"]
    def hstore(r, vaddr, off, tag):
        return [f"s_mov_b32 s{u0}, {off}", "s_nop 0", f"v_permlane16_swap_b32 v{r}, v{r+2}", f"v_permlane16_swap_b32 v{r+1}, v{r+3}",
                Op(f"buffer_store_dwordx4 v[{r}:{r+3}], v{vaddr}, s[{sH}:{sH+3}], s{u0} offen sc1", vm=tag)]
    blocks = []
    for si, st_ in enumerate(SO):
        if st_ < 3:
            for mp in range(4):
                A, B = 2 * mp, 2 * mp + 1; d = gate(A, st_)
                rdy = max(last_pos[(m, j)] for m in (A, B) for j in (st_, st_ + 3))
                blocks.append((rdy, [("q", gate(A, st_), up(A, st_), d), ("q", gate(B, st_), up(B, st_), d + 2)] + hstore(d, vS2, A*MT + st_*16384, ("hs", st_))))
        else:
            for mq in range(2):
                d = mixed(4 * mq); b = []
                for h in range(2):
                    A, B = mixed(4*mq + 2*h), mixed(4*mq + 2*h + 1)
                    b += [f"v_permlane32_swap_b32 v{A+r}, v{B+r}" for r in range(4)] + [("q", A, B, d + 2 * h)]
                rdy = max(last_pos[(m, 6)] for m in range(4 * mq, 4 * mq + 4))
                blocks.append((rdy, b + hstore(d, vS3, 4*mq*MT, ("hs", 3))))
    def flag(n):
        return [f"v_mov_b32 v{vT+4}, {n}", Op(f"buffer_store_dword v{vT+4}, v{vFl}, s[{sH}:{sH+3}], 0 offen sc1", nvm=[("hs", x) for x in SO[:n]], vm=("fl", n))]
    EARLY = o.get("early_h", True)
    if EARLY:
        assert SO == [0, 1, 2, 3]
        HS = [("v", 32), ("v", 64)] + [("a", 48 + 32 * i) for i in range(6)] + [("v", 160), ("v", 192), ("v", 224)]; ACC2 = 96
    else:
        HS = [("a", 48 + 32 * i) for i in range(6)] + [("v", 96 + 32 * i) for i in range(5)]; ACC2 = 32
    def hreg(q, k, mi):
        kind, r = HS[q % 11]
        r += (k * 2 + mi) * 4
        return f"{kind}[{r}:{r+3}]"
    def hload(q, k, mi):
        st_, gi = KG[q]
        sr = TH + q % 4; off = k * 1024
        pre = [f"s_mov_b32 s{sr}, {(16*st_ + 4*gi) * 1024}"] if (k == 0 and mi == 0) else []
        if GR and pre: pre = [f"s_xor_b32 s{sr}, s{TH + (4 if st_ < 3 else 5)}, {(16*st_ + 4*gi) * 1024}"]
        if o.get("no_h") and q >= 2: return ([], Op("s_nop 0", vm=("h", q, k)))
        return (pre, Op(f"buffer_load_dwordx4 {hreg(q, k, mi)}, v{vH1 if mi else vH0}, s[{sH}:{sH+3}], s{sr} offen offset:{off} sc1", vm=("h", q, k)))
    hl = [(q, k, mi) for q in range(14) for k in range(4) for mi in range(2)]
    def acc2(hf, mi, j): return ACC2 + ((hf * 2 + mi) * 4 + j) * 4
    def fw2(u, k): return ((u % 3) * 4 + k) * 4
    NU = 4 * len(GS)
    def rd2(u):
        g, j = divmod(u, 4)
        out = []
        for k in range(4):
            ad = slot_addr(g) + k * 1024
            for hi in range(2):
                r = fw2(u, k) + 2 * hi
                out.append(Op(f"ds_read_b64_tr_b16 a[{r}:{r+1}], v{vWR2 + 4*(ad >> 16) + j} offset:{(ad & 0xffff) + hi*512}", lg=("r", u)))
        return out
    EV = o.get("events") or {"fl1": ("b", 3), "pl1": ("b", 6), "ck1": ("b", 9), "fl2": ("b", 9), "pl2": ("b", 12), "ck2": ("u", 0), "fl4": ("u", 4), "pl4": ("u", 14), "ck4": ("u", 21)}
    at = {n: [] for n in range(14)}; atu = {}
    NB1 = 14 - o.get("defer", 0)
    nh0 = o.get("nh0", 16)
    stage_ok = {}
    STOP = "stop"; HGO = "hgo"; hfirst = []
    for key in sorted(EV, key=lambda z: ("fl", "pl", "ck").index(z[:2])):
        kind, n = key[:2], int(key[2:]); where, pos = EV[key]
        ops = (flag(n) + ([lambda n=n: sat(f"fl{n}")] if where != "u" else [])) if kind == "fl" else ([poll(f"p{n}")] if kind == "pl" else [lambda n=n: sat(f"ck{n}a")] + check(f"p{n}", n) + [lambda n=n: sat(f"ck{n}b")])
        if kind == "ck": stage_ok[n] = 0 if where == "b" else pos + 1
        if where == "b":
            if kind == "ck" and not EARLY: at[pos].append(STOP)
            at[pos] += ops
            if kind == "ck" and n == min(int(k_[2:]) for k_ in EV if k_[:2] == "ck"):
                at[pos].append(HGO)
                for i_, x in enumerate(hl[:nh0]):
                    assert SO.index(KG[x[0]][0]) < n
                    p = hload(*x); hfirst.append(([STOP] if HS[x[0] % 11][0] == "a" else []) + p[0] + [p[1]])
        elif where == "p":
            assert kind != "ck"
            for i_, y in enumerate(ops): fill.add(P0 + pos + min(i_, 1), y)
        else: atu.setdefault(pos, []).append((kind, ops))
    at[min(o.get("b_rd", 12), NB1 - 1)] += [STOP, Op("", nvm=[("d", 0)]), "s_barrier"] + rd2(0) + rd2(1)
    stream = []; deferred = []
    for n, (rdy, items) in enumerate(blocks):
        if n < NB1: stream += [(rdy + 8, x) for x in items] + [(0, lambda n=n: sat(f"b{n}"))] + [(0, x) for x in at[n]]
        else:
            assert not at[n]
            for x in items: deferred += quad(*x[1:]) if isinstance(x, tuple) else [x]
    i0 = [i_ for i_, (r_, y) in enumerate(stream) if y is HGO][0]
    tail = stream[i0 + 1:]; stream = stream[:i0]
    nq = o.get("nh_q", 2)
    def take(n_):
        out = []
        for _ in range(n_):
            if hfirst: out += [(0, y) for y in hfirst.pop(0)]
        return out
    stream += take(o.get("nh_first", nq))
    for r_, y in tail:
        if y is STOP and o.get("nh_flush", True): stream += take(o.get("nh_flush_n", 99))
        stream.append((r_, y))
        if isinstance(y, tuple): stream += take(nq)
    stream += take(99)
    p = JB2
    for x in setup1: p = fill.place(p, x)
    SETUP_END = p
    def cost(x):
        if callable(x) and not isinstance(x, Op): return 0
        t_ = x.text if isinstance(x, Op) else x
        return 2 if t_.startswith(("v_exp", "v_rcp")) else (2 if (isinstance(x, Op) and x.nvm) else 1)
    cap = o.get("j_cap", 2); thresh = o.get("burst", 99); nq_done = [0]
    p = P0
    while stream and o.get("shadow", True):
        rdy, x = stream[0]
        if x is STOP: break
        p = max(p, rdy)
        if p >= 1791: break
        if isinstance(x, tuple):
            nready = len([1 for r_, y in stream if isinstance(y, tuple) and r_ <= p])
            nq_done[0] += 1
            if nready >= thresh or nq_done[0] <= o.get("burst_n0", 0):
                fill.add(p, quad_pk(*x[1:])); stream.pop(0); p += o.get("burst_gap", 0); continue
            if p > 1791 - o.get("j_margin", 10): break
            stream = [(rdy, y) for y in quad(*x[1:])] + stream[1:]; continue
        if isinstance(x, Op) and isinstance(x.vm, tuple) and x.vm[0] == "h": p = max(p, SETUP_END + 1)
        fast = nq_done[0] <= o.get("burst_n0", 0) or (o.get("fast_st") and not (isinstance(x, str) and x.startswith(("v_mul", "v_exp", "v_add", "v_rcp", "v_cvt"))))
        while p < 1791 and not fast and fill.slots(p, cost) + (1 if o.get("j_loose") else cost(x)) > cap: p += 1
        if p >= 1791: break
        fill.add(p, x); stream.pop(0)
    e.weave([mf1(*x) for x in MS], fill)
    e("s_nop 6")
    for rdy, x in stream:
        if x is STOP: continue
        e((quad_pk if o.get("pk", True) else quad)(*x[1:]) if isinstance(x, tuple) else x)
    e(sat("epi"))
    started.clear()
    def mf2(u):
        g, j = divmod(u, 4); q, hf = GS[g]
        out = []
        for mi in range(2):
            for k in (range(4) if mi == 0 else range(3, -1, -1)):
                d = acc2(hf, mi, j)
                c = f"v[{d}:{d+3}]" if d in started else "0"
                started.add(d)
                A = fw2(u, k)
                out.append(Op(f"v_mfma_f32_16x16x32_bf16 v[{d}:{d+3}], a[{A}:{A+3}], {hreg(q, k, mi)}, {c}", nvm=[("h", q, k if (u < o.get("finewait", 4)) else 3)], nlg=[("r", u)]))
        return out
    first_g = {}; last_g = {}
    for g, (q, hf) in enumerate(GS): first_g.setdefault(q, g); last_g[q] = g
    gII = max(g for g in range(len(GS)) if GS[g][1] == 0) + 1
    BF16X = o.get("xbf16", True)
    vXO, vXI, vXFo, vXFi, vO = 20, 21, 22, 23, 25
    work = []
    hq = hl[nh0:]; dq = [(g, k) for g in range(NPRE, len(GS)) for k in range(4)]
    def h_earliest(q, k):
        need = SO.index(KG[q][0]) + 1
        x = min(v for n, v in stage_ok.items() if n >= need)
        if q >= 11: x = max(x, 4 * (last_g[q - 11] + 1))
        return x
    def h_dead(q): return 4 * first_g[q] - o.get("h_lead", 8)
    def d_earliest(g): return max(4 * (g - 10) + 6, 0)
    def d_dead(g): return 4 * g - 2 - o.get("d_lead", 8) - (o.get("d_lead3", 12) if g >= gII else 0)
    items = [(h_dead(q), n, "h", (q, k, mi), h_earliest(q, k)) for n, (q, k, mi) in enumerate(hq)]
    items += [(d_dead(g), 1000 + n, "d", (g, k), d_earliest(g)) for n, (g, k) in enumerate(dq)]
    items.sort()
    rate = o.get("rate", 2)
    ust = 4 * gII + 1 + o.get("x_delay", 0)
    nxs = 4 if BF16X else 8
    ufl = ust + o.get("x_flag", 10)
    upl = ufl + o.get("x_poll", 8)
    uck = upl + o.get("x_chk", 5)
    def give_ops(k):
        if BF16X:
            d = acc2(0, 0, 0) + 8 * k
            pre = [f"v_cvt_pk_bf16_f32 v{d+r}, v{d+2*r}, v{d+2*r+1}" for r in range(4)]
        else:
            d = acc2(0, 0, 0) + 4 * k; pre = []
        if k == 4: pre.append(f"v_add_u32 v{vXO}, 0x1000, v{vXO}")
        return (pre, Op(f"buffer_store_dwordx4 v[{d}:{d+3}], v{vXO}, s[{sH}:{sH+3}], 0 offen offset:{(k % 4)*1024} sc1", vm=("gs", k)))
    def recv_ops(k):
        d = acc2(0, 0, 0) + (8 * k if BF16X else 4 * k)
        pre = [f"v_add_u32 v{vXI}, 0x1000, v{vXI}"] if k == 4 else []
        return (pre, Op(f"buffer_load_dwordx4 v[{d}:{d+3}], v{vXI}, s[{sH}:{sH+3}], 0 offen offset:{(k % 4)*1024} sc1", vm=("rc", k)))
    xflag = [Op(f"buffer_store_dword v{vT+6}, v{vXFo}, s[{sH}:{sH+3}], 0 offen sc1", nvm=[("gs", nxs - 1)], vm="xf")]
    xpoll = Op(f"buffer_load_dword v{vPD}, v{vXFi}, s[{sH}:{sH+3}], 0 offen sc1", vm="pX")
    def xcheck(): return check("pX", 0, ld=xpoll.text, cmp=f"v_cmp_gt_u32 vcc, v{vT+7}, v{vPD}")
    setup2 = [f"v_accvgpr_read_b32 v{vXFo}, a{PARK+0}", f"v_accvgpr_read_b32 v{vXFi}, a{PARK+1}", f"v_accvgpr_read_b32 v{vXO}, a{PARK+2}",
              f"v_accvgpr_read_b32 v{vXI}, a{PARK+3}", f"v_accvgpr_read_b32 v{vT+7}, a{PARK+12}", f"v_mov_b32 v{vT+6}, 1", f"v_accvgpr_read_b32 v{vO}, a{PARK+8}", ""]
    def unpack(k):
        g0 = acc2(0, 0, 0) + 8 * k
        out = []
        for r in (3, 2, 1, 0):
            out += [f"v_and_b32 v{g0+2*r+1}, 0xffff0000, v{g0+r}", f"v_lshlrev_b32 v{g0+2*r}, 16, v{g0+r}"]
        out[0] = Op(out[0], nvm=[("rc", k)])
        return out
    TAIL2 = BF16X and o.get("tail2", True)
    unp = [x for k in range(4) for x in unpack(k)] if TAIL2 else []
    u_def = [None]
    gs_left = list(range(nxs)); rc_left = list(range(nxs)); xstate = 0
    for u in range(NU):
        fill = Fill()
        g, j = divmod(u, 4)
        bar_next = (j == 1 and g + 1 < len(GS))
        if u + 2 < NU:
            for k, r in enumerate(rd2(u + 2)): fill.add(min(k, 6) if bar_next else k, r)
        p = 0
        def put(pre, op):
            nonlocal p
            for x in pre: p = fill.place(p, x, hi=6)
            if pre: p += 1
            p = fill.place(min(p, 6), op, hi=6)
            p = min(p + o.get("vsp", 2), 6)
        for kind, ops in atu.get(u, []):
            if kind != "ck": put(ops[:-1], ops[-1])
        if 20 <= u < 28: fill.place(5, setup2[u - 20], hi=7)
        n = 0
        if u >= ust and gs_left:
            for _ in range(1 if BF16X else 2):
                put(*give_ops(gs_left.pop(0))); n += 1
        rc_now = xstate == 3 and bool(rc_left)
        if rc_now:
            for _ in range(2):
                put(*recv_ops(rc_left.pop(0))); n += 1
        rt = rate if isinstance(rate, int) else int((u + 1) * rate) - int(u * rate)
        i = 0
        blocked = set()
        while n < o.get("rate_max", 3) and i < len(items):
            dl, _, kind, x, ea = items[i]
            if n >= rt and dl > u: break
            if kind == "h" and deferred and HS[x[0] % 11] == ("v", 224): ea = u + 1
            if ea <= u and kind not in blocked:
                items.pop(i); put(*(hload(*x) if kind == "h" else dma2(*x))); n += 1
            else:
                blocked.add(kind); i += 1
        if u >= o.get("defer_from", 2):
            nd = 0
            for g_ in range(7):
                if deferred and fill.load(g_) < 2 and nd < o.get("defer_rate", 4): fill.add(g_, deferred.pop(0)); nd += 1
            if not deferred and u_def[0] is None: u_def[0] = u
        for kind, ops in atu.get(u, []):
            if kind == "ck": fill.add(7, ops)
        if xstate == 0 and u >= ufl and not gs_left: fill.add(7, [sat("y0")] + xflag + [sat("y1")]); xstate = 1
        elif xstate == 1 and u >= upl: fill.add(7, xpoll); xstate = 2
        elif xstate == 2 and u >= uck: fill.add(7, [sat("y2")] + xcheck() + [sat("y3")]); xstate = 3
        if u >= NU - o.get("unp_units", 2) and not rc_left and not rc_now:
            for g_ in range(8):
                while unp and fill.load(g_) < 2: fill.add(g_, unp.pop(0))
        if u == 4 * 2 * q1 - 1: fill.add(7, sat("pI"))
        if u == 4 * gII - 1: fill.add(7, sat("pII"))
        fill.add(7, sat(f"u{u}"))
        if bar_next: fill.add(7, [Op("", nvm=[("d", g + 1)], nlg=[("r", u + 1)]), "s_barrier"])
        e.weave(mf2(u), fill)
    assert not items, items
    e(sat("pIII"))
    e("s_nop 7")
    for k in gs_left: p = give_ops(k); e(p[0]); e(p[1])
    e(sat("x0"))
    if xstate == 0: e(xflag); xstate = 1
    e(sat("x1"))
    if xstate == 1: e(xpoll); xstate = 2
    if xstate == 2: e(xcheck())
    e(sat("x2"))
    for k in rc_left: p = recv_ops(k); e(p[0]); e(p[1])
    if "x3" in STAT: e("s_waitcnt vmcnt(0)"); e(sat("x3"))
    for mi in range(2):
        for jp in range(2):
            d0, g0 = acc2(1, mi, 2 * jp), acc2(0, mi, 2 * jp)
            if TAIL2:
                while len(unp) > 8 * (3 - (mi * 2 + jp)): e(unp.pop(0))
                for r in range(0, 8, 2): e(f"v_pk_add_f32 v[{d0+r}:{d0+r+1}], v[{d0+r}:{d0+r+1}], v[{g0+r}:{g0+r+1}]")
            elif BF16X:
                e.wait(nvm=[("rc", mi * 2 + jp)])
                for r in range(4):
                    e(f"v_lshlrev_b32 v{g0+4}, 16, v{g0+r}\nv_and_b32 v{g0+5}, 0xffff0000, v{g0+r}\nv_add_f32 v{d0+2*r}, v{d0+2*r}, v{g0+4}\nv_add_f32 v{d0+2*r+1}, v{d0+2*r+1}, v{g0+5}")
            else:
                e.wait(nvm=[("rc", mi * 4 + 2 * jp + 1)])
                for r in range(8): e(f"v_add_f32 v{d0+r}, v{d0+r}, v{g0+r}")
            r = g0
            e(f"""v_cvt_pk_bf16_f32 v{r}, v{d0}, v{d0+1}
            v_cvt_pk_bf16_f32 v{r+1}, v{d0+2}, v{d0+3}
            v_cvt_pk_bf16_f32 v{r+2}, v{d0+4}, v{d0+5}
            v_cvt_pk_bf16_f32 v{r+3}, v{d0+6}, v{d0+7}
            s_mov_b32 s{t0}, {mi*16*2048}
            s_nop 0
            v_permlane16_swap_b32 v{r}, v{r+2}
            v_permlane16_swap_b32 v{r+1}, v{r+3}""")
            e(Op(f"buffer_store_dwordx4 v[{r}:{r+3}], v{vO}, s[{sX}:{sX+3}], s{t0} offen offset:{jp*64} {o.get('out_aux', 'nt')}", vm=True))
    e(sat("x4"))
    if ST:
        e("s_waitcnt vmcnt(0)")
        k = nst[0]; assert k <= 14, k
        nst[0] = 14; e(stamp()); e(stamp(True))
        e(f"""s_waitcnt lgkmcnt(0)
        s_cmp_lg_u32 s{s_w}, 0
        s_cbranch_scc1 L_end
        s_lshl_b32 s3, s2, 7
        s_add_u32 s3, s3, {STAMP_OFF}
        v_mov_b32 v28, s3
        s_mov_b64 exec, 1""")
        for i in range(16):
            r = 64 + 2 * (i if (i < k or i >= 14) else 14)
            e(f"v_mov_b32 v30, s{r}\nv_mov_b32 v31, s{r+1}\nglobal_store_dwordx2 v28, v[30:31], s[{sH}:{sH+1}] offset:{8*i}\ns_nop 1")
        e("s_waitcnt vmcnt(0)")
    if o.get("diag"):
        e(f"""s_waitcnt vmcnt(0)
        s_memrealtime s[68:69]
        s_memtime s[70:71]
        s_waitcnt lgkmcnt(0)
        s_sub_u32 s72, s68, s64
        s_sub_u32 s73, s70, s66
        v_mov_b32 v4, s72
        v_mov_b32 v5, s73
        s_lshl_b32 s74, s2, 3
        s_add_u32 s74, s74, 8
        s_cmp_lt_u32 s2, 7
        s_cselect_b32 s74, s74, 256
        v_mov_b32 v6, s74
        buffer_store_dwordx2 v[4:5], v6, s[{sG}:{sG+3}], 0 offen""")
        mode = o["diag"]
        if mode != "plain":
            if mode == "fixed": e("s_add_u32 s75, s64, 6000")
            elif mode == "twice": e("s_add_u32 s75, s68, s72")
            elif mode == "cyc": e("s_lshr_b32 s75, s73, 4\ns_add_u32 s75, s75, s64\ns_add_u32 s75, s75, 3000")
            e("""L_diag_spin:
            s_memrealtime s[68:69]
            s_waitcnt lgkmcnt(0)
            s_sub_u32 s72, s68, s75
            s_cmp_lt_i32 s72, 0
            s_cbranch_scc1 L_diag_spin""")
    e("L_end:\ns_endpgm")
    e(f"""L_hs_add:
    s_mov_b32 s{t0}, 1
    s_atomic_add s{t0}, s[{sG}:{sG+1}], 0
    s_branch L_hs_ret""")
    for lab, ld, cmp in spins:
        e(f"""{lab}:
        s_mov_b32 s3, 0x40000
        {lab}_loop:
        {ld}
        s_sub_u32 s3, s3, 1
        s_cmp_eq_u32 s3, 0
        s_waitcnt vmcnt(0)
        s_cbranch_scc1 {lab}_ret
        {cmp}
        s_cbranch_vccnz {lab}_loop
        s_branch {lab}_ret""")
    return descriptor(name, 512, 256)

def build(fn, **o):
    a = Asm()
    d = gen(a, NAME, o)
    a(".fill 8192, 4, 0xbf800000")
    wf = lambda t: wrap([(NAME, 256, 256, 163840)], t, [d])
    if o.get("visit", True): a.lines, n = add_pads(a.lines, wf)
    open(fn, "w").write(wf(a.text()))

if __name__ == "__main__":
    build("k4.s")
    build("k4_st.s", stamps=True)
```

```python
import sys
from best import *
build("final_raw.s", **BEST)
s = open("final_raw.s").read()
doc = """;
;
"""
i = s.index('.amdgcn_target')
s = s[:i] + doc + s[i:]
open(sys.argv[1], "w").write(s)
```
